```python
import torch

def _softmax(x, axis=-1):
    return torch.softmax(x, dim=axis)
def _gelu(x):
    return torch.nn.functional.gelu(x, approximate="tanh")
def _silu(x):
    return torch.nn.functional.silu(x)
def _sigmoid(x):
    return torch.sigmoid(x)
def _layernorm(x, axis=-1, eps=1e-5):
    m = x.mean(dim=axis, keepdim=True)
    v = x.var(dim=axis, keepdim=True, unbiased=False)
    return (x - m) / torch.sqrt(v + eps)
def _scatter_add(tgt, idx, src, axis=0):
    return tgt.clone().index_add_(axis, idx, src)
def _segment_sum(src, seg, n):
    out = torch.zeros((n,) + src.shape[1:], dtype=src.dtype)
    return out.index_add_(0, seg, src)
def _pad(x, pw):
    flat = tuple(v for pair in reversed(pw) for v in pair)
    return torch.nn.functional.pad(x, flat)

kernel_name = 'sequential_preLN__compressed_kv_cla__glu_gated_reglu__prompt'

def setup_inputs():

    _w = (lambda a: (lambda t: t.to(torch.bfloat16) if t.is_floating_point() else t)(torch.as_tensor(a)))
    def _A_setup():
        B, H, Sq, Sk, D, M = 1, 32, 2048, 2048, 128, 576
        Dc = 4 * D
        return {
            "x": _w((lambda *s: torch.randn(*s, dtype=torch.bfloat16) * 0.05)(B, Sq, M)),
            "c_kv": _w((lambda *s: torch.randn(*s, dtype=torch.bfloat16) * 0.4)(B, Sk, Dc)),
            "w_q": _w((lambda *s: torch.randn(*s, dtype=torch.bfloat16) * 1.6)(M, H, D) * (M ** -0.5)),
            "w_uk": _w((lambda *s: torch.randn(*s, dtype=torch.bfloat16) * 1.6)(Dc, H, D) * (Dc ** -0.5)),
            "w_uv": _w((lambda *s: torch.randn(*s, dtype=torch.bfloat16) * 0.4)(Dc, H, D) * (Dc ** -0.5)),
            "w_o": _w((lambda *s: torch.randn(*s, dtype=torch.bfloat16) * 0.4)(H, D, M) * ((H * D) ** -0.5)),
        }
    _A_in = _A_setup()

    def _B_setup():
        B, S, D, F = 1, 2048, 576, 4608
        return {
            "x": _w((lambda *s: torch.randn(*s, dtype=torch.bfloat16) * 0.05)(B, S, D)),
            "W_gate": _w((lambda *s: torch.randn(*s, dtype=torch.bfloat16) * 0.2)(D, F) * (2.0 / D) ** 0.5),
            "W_up": _w((lambda *s: torch.randn(*s, dtype=torch.bfloat16) * 0.2)(D, F) * (2.0 / D) ** 0.5),
            "W_down": _w((lambda *s: torch.randn(*s, dtype=torch.bfloat16) * 0.2)(F, D) * (1.0 / F) ** 0.5),
        }
    _B_in = _B_setup()

    return {
        "A_x": _A_in["x"],
        "A_c_kv": _A_in["c_kv"],
        "A_w_q": _A_in["w_q"],
        "A_w_uk": _A_in["w_uk"],
        "A_w_uv": _A_in["w_uv"],
        "A_w_o": _A_in["w_o"],
        "B_x": _B_in["x"],
        "B_W_gate": _B_in["W_gate"],
        "B_W_up": _B_in["W_up"],
        "B_W_down": _B_in["W_down"],
    }

def reference(A_x, A_c_kv, A_w_q, A_w_uk, A_w_uv, A_w_o, B_x, B_W_gate, B_W_up, B_W_down):
    def _A_ref(x, c_kv, w_q, w_uk, w_uv, w_o):
        B, Sq, M = x.shape[0], x.shape[1], x.shape[2]
        Sk = c_kv.shape[1]
        H, D = w_q.shape[1], w_q.shape[2]
        q = torch.einsum("bqm,mhd->bhqd", x, w_q)
        k = torch.einsum("bkc,chd->bhkd", c_kv, w_uk)
        v = torch.einsum("bkc,chd->bhkd", c_kv, w_uv)
        scores = torch.einsum("bhqd,bhkd->bhqk", q, k) * (D ** -0.5)
        off = Sk - Sq
        qi = torch.arange(Sq)[:, None]
        kj = torch.arange(Sk)[None, :]
        cmask = kj <= (qi + off)
        scores = torch.where(cmask[None, None], scores, -1e9)
        p = _softmax(scores, axis=-1)
        ctx = torch.einsum("bhqk,bhkd->bhqd", p, v)
        return torch.einsum("bhqd,hdm->bqm", ctx, w_o)

    def _B_ref(x, W_gate, W_up, W_down):
        gate = torch.einsum("bsd,df->bsf", x, W_gate)
        up = torch.einsum("bsd,df->bsf", x, W_up)
        gate = gate * (lambda x, dt: x.to(dt))(gate > 0, gate.dtype)
        h = gate * up
        return torch.einsum("bsf,fd->bsd", h, W_down)

    x = A_x
    h = x + _A_ref(_layernorm(x, axis=-1), A_c_kv, A_w_q, A_w_uk, A_w_uv, A_w_o)
    h2 = h + _B_ref(_layernorm(h, axis=-1), B_W_gate, B_W_up, B_W_down)
    return h2
```

```python
import re

REG_RE = re.compile(r'\b([vas])(\d+)\b|\b([vas])\[(\d+):(\d+)\]')
TRANS = ('v_exp_', 'v_log_', 'v_rcp_', 'v_rsq_', 'v_sqrt_', 'v_sin_', 'v_cos_')


def regs_of(tok):
    tok = tok.strip()
    out = []
    if tok.startswith('-') or tok.startswith('|'):
        tok = tok.strip('-|')
    if tok == 'vcc':
        return [('s', 'vcc')]
    if tok == 'exec':
        return [('s', 'exec')]
    if tok == 'm0':
        return [('s', 'm0')]
    if tok == 'scc':
        return []
    m = re.fullmatch(r'([vas])(\d+)', tok)
    if m:
        return [(m.group(1), int(m.group(2)))]
    m = re.fullmatch(r'([vas])\[(\d+):(\d+)\]', tok)
    if m:
        return [(m.group(1), i) for i in range(int(m.group(2)), int(m.group(3)) + 1)]
    return out


class I:
    __slots__ = ('text', 'op', 'kind', 'rd', 'wr', 'grp', 'newgrp', 'need', 'wvm', 'wlg', 'nops',
                 'passes', 'srcc', 'dst', 'wide', 'lds', 'trans', 'prio', 'gap', 'cmt')

    def __init__(self, text, grp=None, newgrp=False, need=None, prio=None, cmt=None):
        self.text = text.strip()
        self.grp = grp
        self.newgrp = newgrp
        self.need = need or []
        self.wvm = None
        self.wlg = None
        self.nops = 0
        self.passes = 0
        self.srcc = []
        self.dst = []
        self.wide = False
        self.lds = False
        self.trans = False
        self.prio = prio
        self.gap = None
        self.cmt = cmt
        self.rd = set()
        self.wr = set()
        self.parse()

    def parse(self):
        t = self.text
        if t == '' or t.endswith(':') or t.startswith('.') or t.startswith(';'):
            self.kind = 'txt'
            self.op = ''
            return
        t = t.split(';')[0].strip()
        sp = t.split(None, 1)
        op = sp[0]
        self.op = op
        rest = sp[1] if len(sp) > 1 else ''
        ops = [o.strip() for o in rest.split(',')] if rest else []
        mods = ''
        if ops:
            last = ops[-1].split(None, 1)
            ops[-1] = last[0]
            mods = last[1] if len(last) > 1 else ''
        R = [regs_of(o) for o in ops]
        rd, wr = set(), set()
        if op.startswith('v_mfma'):
            self.kind = 'mfma'
            self.passes = 8 if '32x32x16' in op else (4 if '16x16x32' in op else 16)
            wr |= set(R[0])
            rd |= set(R[1]) | set(R[2]) | set(R[3])
            self.srcc = R[3]
            self.dst = R[0]
        elif op.startswith('ds_'):
            self.kind = 'ds'
            if op.startswith('ds_read') or op.startswith('ds_bpermute') or op.startswith('ds_swizzle') or op.startswith('ds_permute'):
                wr |= set(R[0])
                for r in R[1:]:
                    rd |= set(r)
            else:
                for r in R:
                    rd |= set(r)
        elif op.startswith('buffer_') or op.startswith('global_'):
            self.kind = 'vmem'
            allm = ' ' + mods + ' '
            if op.startswith('buffer_load'):
                if ' lds ' in allm:
                    self.lds = True
                    rd.add(('s', 'm0'))
                    for r in R:
                        rd |= set(r)
                else:
                    wr |= set(R[0])
                    for r in R[1:]:
                        rd |= set(r)
            elif op.startswith('buffer_store') or op.startswith('buffer_atomic'):
                for r in R:
                    rd |= set(r)
                self.dst = R[0]
                self.wide = ('x4' in op or 'x3' in op)
                if op.startswith('buffer_atomic') and ' sc0 ' in allm:
                    wr |= set(R[0])
            elif op in ('buffer_wbl2', 'buffer_inv'):
                pass
            else:
                raise ValueError('unhandled vmem ' + t)
        elif op.startswith('s_load') or op.startswith('s_memtime') or op.startswith('s_memrealtime'):
            self.kind = 'smem'
            wr |= set(R[0])
            for r in R[1:]:
                rd |= set(r)
        elif op == 's_waitcnt':
            self.kind = 'wait'
        elif op == 's_nop':
            self.kind = 'nop'
        elif op == 's_barrier':
            self.kind = 'bar'
        elif op.startswith('s_cbranch') or op == 's_branch' or op == 's_endpgm' or op == 's_setprio':
            self.kind = 'ctl'
            if 'vcc' in op:
                rd.add(('s', 'vcc'))
            if 'exec' in op:
                rd.add(('s', 'exec'))
        elif op.startswith('s_'):
            self.kind = 'salu'
            if op.startswith('s_cmp') or op.startswith('s_bitcmp'):
                for r in R:
                    rd |= set(r)
            else:
                if R:
                    wr |= set(R[0])
                for r in R[1:]:
                    rd |= set(r)
                if 'saveexec' in op:
                    wr.add(('s', 'exec'))
                    rd.add(('s', 'exec'))
                if op.startswith('s_cmov') or op.startswith('s_addk') or op.startswith('s_mulk') or op.startswith('s_bitset'):
                    rd |= set(R[0])
        elif op.startswith('v_'):
            self.kind = 'valu'
            self.trans = op.startswith(TRANS)
            if op.startswith('v_cmp'):
                if op.startswith('v_cmpx'):
                    wr.add(('s', 'exec'))
                wr |= set(R[0])
                for r in R[1:]:
                    rd |= set(r)
            elif op.startswith('v_permlane') and 'swap' in op:
                wr |= set(R[0]) | set(R[1])
                rd |= set(R[0]) | set(R[1])
            elif op.startswith('v_swap'):
                wr |= set(R[0]) | set(R[1])
                rd |= set(R[0]) | set(R[1])
            else:
                wr |= set(R[0])
                k = 1
                if (op.startswith('v_add_co') or op.startswith('v_sub_co') or op.startswith('v_addc_co')
                        or op.startswith('v_subb_co') or op.startswith('v_div_scale') or op.startswith('v_mad_u64')):
                    wr |= set(R[1])
                    k = 2
                for r in R[k:]:
                    rd |= set(r)
                if op.startswith('v_cndmask') and len(ops) == 3:
                    rd.add(('s', 'vcc'))
                if (op.startswith('v_fmac') or op.startswith('v_mac') or op.startswith('v_dot2c') or op.startswith('v_writelane')
                        or op.startswith('v_pk_fmac') or 'dpp' in op or 'row_' in mods or 'quad_perm' in mods or 'sdwa' in op):
                    rd |= set(R[0])
        else:
            raise ValueError('unknown instruction: ' + t)
        self.rd, self.wr = rd, wr

    def is_dpp(self):
        return 'dpp' in self.op or 'row_' in self.text or 'quad_perm' in self.text


def ins(x, **kw):
    return x if isinstance(x, I) else I(x, **kw)


class Block(list):
    def add(self, x, **kw):
        if isinstance(x, (list, tuple)):
            for y in x:
                self.add(y, **kw)
            return self
        if isinstance(x, str) and '\n' in x:
            for y in x.split('\n'):
                if y.strip():
                    self.append(I(y, **kw))
            return self
        i = ins(x, **kw)
        self.append(i)
        return self

    def need(self, *deps):
        self.append(I('', need=list(deps)))
        return self


def resolve_waits(paths, verbose=False):
    changed = True
    it = 0
    while changed:
        changed = False
        it += 1
        assert it < 50
        for path in paths:
            vq = []
            lq = []
            gcount = {}
            for blk in path:
                for x in blk:
                    if x.kind == 'txt' and not x.need:
                        continue
                    touched = x.rd | x.wr
                    nvm = None
                    nlg = None
                    if x.kind == 'wait':
                        m = re.search(r'vmcnt\((\d+)\)', x.text)
                        if m:
                            n = int(m.group(1))
                            vq = vq[len(vq) - n:] if n < len(vq) else vq
                            if n == 0:
                                vq = []
                        m = re.search(r'lgkmcnt\((\d+)\)', x.text)
                        if m:
                            n = int(m.group(1))
                            lq = lq[len(lq) - n:] if n < len(lq) else lq
                            if n == 0:
                                lq = []
                        continue
                    for p, (regs, tag, gid) in enumerate(vq):
                        if regs & touched:
                            k = len(vq) - 1 - p
                            nvm = k if nvm is None else min(nvm, k)
                    for dep in x.need:
                        tag = dep[0]
                        lim = (dep[2] + 1) if len(dep) == 3 else gcount.get(tag, 0) - dep[1]
                        for p, (regs, t2, gid) in enumerate(vq):
                            if t2 == tag and gid <= lim:
                                k = len(vq) - 1 - p
                                nvm = k if nvm is None else min(nvm, k)
                    for p, (regs, sm, t2, gid) in enumerate(lq):
                        hit = bool(regs & touched)
                        for dep in x.need:
                            tag = dep[0]
                            lim = (dep[2] + 1) if len(dep) == 3 else gcount.get(tag, 0) - dep[1]
                            if t2 == tag and gid <= lim:
                                hit = True
                        if hit:
                            k = 0 if (sm or any(e[1] for e in lq)) else len(lq) - 1 - p
                            nlg = k if nlg is None else min(nlg, k)
                    if x.kind == 'bar' or ('lgkm', 0) in x.need:
                        pass
                    for dep in x.need:
                        tag, back = dep[0], dep[-1]
                        if tag == 'lgkm' and len(lq) > back:
                            nlg = back if nlg is None else min(nlg, back)
                        if tag == 'vm' and len(vq) > back:
                            nvm = back if nvm is None else min(nvm, back)
                    if nvm is not None:
                        nvm = min(nvm, 63)
                        if x.wvm is None or nvm < x.wvm:
                            x.wvm = nvm
                            changed = True
                    if nlg is not None:
                        nlg = min(nlg, 15)
                        if x.wlg is None or nlg < x.wlg:
                            x.wlg = nlg
                            changed = True
                    if x.wvm is not None and len(vq) > x.wvm:
                        vq = vq[len(vq) - x.wvm:] if x.wvm > 0 else []
                    if x.wlg is not None and len(lq) > x.wlg:
                        lq = lq[len(lq) - x.wlg:] if x.wlg > 0 else []
                    if x.kind == 'vmem':
                        gid = None
                        if x.grp:
                            if x.newgrp:
                                gcount[x.grp] = gcount.get(x.grp, 0) + 1
                            gid = gcount.get(x.grp, 0)
                        vq.append((frozenset(x.wr), x.grp, gid))
                        assert len(vq) <= 63 + 0 or True
                        if len(vq) > 63:
                            if x.wvm is None or x.wvm > 62:
                                x.wvm = 62
                                changed = True
                    elif x.kind == 'ds':
                        gid = None
                        if x.grp:
                            if x.newgrp:
                                gcount[x.grp] = gcount.get(x.grp, 0) + 1
                            gid = gcount.get(x.grp, 0)
                        lq.append((frozenset(x.wr), False, x.grp, gid))
                        if len(lq) > 15 + 0:
                            pass
                    elif x.kind == 'smem':
                        lq.append((frozenset(x.wr), True, None, None))


def resolve_hazards(paths, report=True, name=''):
    added = []
    changed = True
    it = 0
    while changed:
        changed = False
        it += 1
        assert it < 50
        for path in paths:
            pos = 0
            lastw = {}
            mfc = {}
            stw = {}
            for blk in path:
                for x in blk:
                    if x.kind == 'txt':
                        if x.wvm is not None or x.wlg is not None:
                            pos += 1
                        continue
                    if x.wvm is not None or x.wlg is not None:
                        pos += 1
                    need = 0

                    def req(p, states):
                        nonlocal need
                        have = pos + x.nops - p - 1
                        if have < states:
                            need = max(need, states - have)
                    for r in x.rd:
                        w = lastw.get(r)
                        if not w:
                            continue
                        p, k, info = w
                        if x.kind == 'mfma':
                            if k == 'valu':
                                req(p, 2)
                            elif k == 'mfma':
                                passes, dst = info
                                if r in x.srcc and not (r in (x.rd - set(x.srcc)) and False):
                                    if x.srcc == dst and x.passes == passes:
                                        pass
                                    else:
                                        req(p, 10 if passes == 8 else 6)
                                ab = set()
                                toks = x.text.split(None, 1)[1].split(',')
                                ab = set(regs_of(toks[1])) | set(regs_of(toks[2]))
                                if r in ab:
                                    req(p, 12 if passes == 8 else 8)
                        elif x.kind in ('valu', 'vmem', 'ds'):
                            if k == 'mfma':
                                req(p, 12 if info[0] == 8 else 8)
                            elif k == 'valu':
                                if r[0] == 's':
                                    if x.kind == 'vmem':
                                        req(p, 5)
                                    elif x.kind == 'valu':
                                        if x.op.startswith('v_readlane') or x.op.startswith('v_writelane'):
                                            req(p, 4)
                                        else:
                                            req(p, 2)
                                else:
                                    if x.kind == 'valu':
                                        if x.op.startswith('v_readfirstlane') or x.op.startswith('v_readlane'):
                                            req(p, 1)
                                        if x.op.startswith('v_permlane') or x.is_dpp():
                                            req(p, 2)
                                        if info and not x.trans:
                                            req(p, 1)
                            elif k == 'salu':
                                if r == ('s', 'm0') and x.kind == 'vmem' and x.lds:
                                    req(p, 1)
                        elif x.kind == 'ctl':
                            if k == 'valu' and r == ('s', 'vcc'):
                                req(p, 5 if False else 1)
                    for r in x.wr:
                        w = lastw.get(r)
                        if w and w[1] == 'mfma' and x.kind in ('valu', 'vmem', 'ds'):
                            req(w[0], 12 if w[2][0] == 8 else 8)
                        if x.kind == 'valu' and r in mfc:
                            p, passes = mfc[r]
                            req(p, 7 if passes == 8 else 3)
                        if r in stw:
                            req(stw[r], 2 if x.kind == 'valu' else 1)
                    if x.kind == 'mfma':
                        e = lastw.get(('s', 'exec'))
                        if e and e[1] == 'valu':
                            req(e[0], 4)
                    if need > 0:
                        x.nops += need
                        added.append((x.text, need))
                        changed = True
                    pos += x.nops
                    if x.kind == 'nop':
                        n = int(x.text.split()[1], 0)
                        pos += n + 1
                        continue
                    if x.kind == 'mfma':
                        for r in x.wr:
                            lastw[r] = (pos, 'mfma', (x.passes, x.dst))
                        for r in x.srcc:
                            mfc[r] = (pos, x.passes)
                    elif x.kind == 'valu':
                        for r in x.wr:
                            lastw[r] = (pos, 'valu', x.trans)
                    elif x.kind == 'salu':
                        for r in x.wr:
                            lastw[r] = (pos, 'salu', None)
                    else:
                        for r in x.wr:
                            lastw.pop(r, None)
                    if x.kind == 'vmem' and x.wide:
                        for r in x.dst:
                            stw[r] = pos
                    pos += 1
    if report and added:
        print(f'[{name}] hazard nops inserted: {len(added)}')
        for t, n in added[:40]:
            print('    ', n, t)


def emit(blocks):
    out = []
    for blk in blocks:
        for x in blk:
            w = []
            if x.wvm is not None:
                w.append(f'vmcnt({x.wvm})')
            if x.wlg is not None:
                w.append(f'lgkmcnt({x.wlg})')
            n = x.nops
            if w:
                out.append('  s_waitcnt ' + ' '.join(w))
            while n > 0:
                k = min(n, 16)
                out.append(f'  s_nop {k - 1}')
                n -= k
            if x.text:
                if x.kind == 'txt':
                    out.append(x.text)
                else:
                    out.append('  ' + x.text + (f'   ; {x.cmt}' if x.cmt else ''))
    return '\n'.join(out) + '\n'


PRIO = {'ds': 0, 'vmem': 1, 'valu': 3, 'salu': 4, 'bar': 5, 'txt': 5, 'wait': 5, 'ctl': 6, 'nop': 3, 'smem': 4}


class Sched:
    def __init__(self):
        self.m = []
        self.fill = {}
        self.seq = 0

    def mf(self, text, **kw):
        self.m.append(I(text, **kw))
        return len(self.m) - 1

    def n(self):
        return len(self.m)

    def at(self, gap, x, prio=None, **kw):
        if isinstance(x, (list, tuple)):
            for y in x:
                self.at(gap, y, prio, **kw)
            return
        i = ins(x, **kw)
        p = prio if prio is not None else (i.prio if i.prio is not None else PRIO[i.kind])
        self.seq += 1
        self.fill.setdefault(gap, []).append((p, self.seq, i))

    def load(self, gap):
        return sum(cost(i) for _, _, i in self.fill.get(gap, []))

    def spread(self, items, g0, g1, prio=None, cap=None):
        n = len(items)
        if n == 0:
            return
        span = g1 - g0
        for k, it in enumerate(items):
            g = g0 + (k * span) // n
            self.at(g, it, prio)

    def pack(self, items, g0, g1, cap=6, prio=None):
        g = g0
        if prio is None:
            prio = 2
        for it in items:
            c = sum(cost(ins(y)) for y in it) if isinstance(it, (list, tuple)) else cost(ins(it))
            while g < g1 - 1 and self.load(g) + c > cap:
                g += 1
            self.at(g, it, prio)
        return g

    def block(self):
        b = Block()
        for p, s, i in sorted(self.fill.get(-1, []), key=lambda e: (e[0], e[1])):
            b.append(i)
        for g, m in enumerate(self.m):
            b.append(m)
            for p, s, i in sorted(self.fill.get(g, []), key=lambda e: (e[0], e[1])):
                b.append(i)
        return b


def cost(i):
    if i.kind == 'txt':
        return 1 if i.need else 0
    if i.kind == 'valu' and i.trans:
        return 2
    return 1


def estimate(blk, label=''):
    tot = 0
    cur = None
    slots = 0
    over = 0
    n = 0
    for x in blk:
        c = 0
        if x.wvm is not None or x.wlg is not None:
            c += 1
        c += x.nops
        if x.kind == 'mfma':
            slots += c
            if cur is not None:
                base = 32 if cur == 8 else 16
                t = max(base, 8 + 4 * slots)
                tot += t
                if t > base:
                    over += 1
            else:
                tot += 4 * slots
            cur = x.passes
            slots = 0
            n += 1
        elif x.kind != 'txt':
            slots += c + (2 if (x.kind == 'valu' and x.trans) else 1)
        else:
            slots += c
    if cur is not None:
        tot += max(32 if cur == 8 else 16, 8 + 4 * slots)
    else:
        tot += 4 * slots
    return tot, n, over


KERNEL_TAIL = """.section .rodata,"a"
.p2align 6
.amdhsa_kernel {name}
  .amdhsa_next_free_vgpr {vgpr}
  .amdhsa_next_free_sgpr 102
  .amdhsa_accum_offset {acc}
  .amdhsa_group_segment_fixed_size 0
  .amdhsa_kernarg_size 104
  .amdhsa_user_sgpr_count 2
  .amdhsa_user_sgpr_kernarg_segment_ptr 1
  .amdhsa_system_sgpr_workgroup_id_x 1
.end_amdhsa_kernel
"""


def kernel_text(name, blocks, vgpr=512, acc=256):
    s = '.text\n.globl %s\n.p2align 8\n.type %s,@function\n%s:\n' % (name, name, name)
    s += emit(blocks)
    s += KERNEL_TAIL.format(name=name, vgpr=vgpr, acc=acc)
    return s
```

```python
from asmgen import *

WS_KV = 0
WS_XN = 32 << 20
WS_CTX = 36 << 20
WS_H = 54 << 20
WS_ST = 58 << 20
WS_FF = 60 << 20
WS_SIZE = 268435456
XN_SCALE = 1.4426950408889634 / (128 ** 0.5)

KA_X, KA_CKV, KA_WQ, KA_WUK, KA_WUV, KA_WO, KA_BX, KA_WG, KA_WU, KA_WD, KA_OUT, KA_DBG, KA_WS = [8 * i for i in range(13)]


def srd(b, s, ptr, size, off=0):
    if off:
        b.add(f's_add_u32 s{s}, s{ptr}, {off}')
        b.add(f's_addc_u32 s{s+1}, s{ptr+1}, 0')
    else:
        b.add(f's_mov_b32 s{s}, s{ptr}')
        b.add(f's_mov_b32 s{s+1}, s{ptr+1}')
    b.add(f's_mov_b32 s{s+2}, {size}')
    b.add(f's_mov_b32 s{s+3}, 0x00020000')


def vr(base, n):
    return f'v[{base}:{base+n-1}]' if n > 1 else f'v{base}'


def ar(base, n):
    return f'a[{base}:{base+n-1}]' if n > 1 else f'a{base}'


def sr(base, n):
    return f's[{base}:{base+n-1}]' if n > 1 else f's{base}'


WS_TS = 100 << 20


def ts_begin(b):
    b.add('s_memrealtime s[96:97]')


def ts_end(b, kidx):
    b.add('s_waitcnt vmcnt(0) lgkmcnt(0)')
    b.add('s_memrealtime s[98:99]')
    b.add(f's_load_dwordx2 s[92:93], s[0:1], {KA_WS}')
    b.add('s_waitcnt lgkmcnt(0)')
    b.add(f's_add_u32 s92, s92, {WS_TS + kidx * 512 * 64}')
    b.add('s_addc_u32 s93, s93, 0')
    b.add('s_mov_b32 s94, 32768')
    b.add('s_mov_b32 s95, 0x00020000')
    b.add('v_mov_b32 v4, s96')
    b.add('v_mov_b32 v5, s97')
    b.add('v_mov_b32 v6, s98')
    b.add('v_mov_b32 v7, s99')
    b.add('v_lshrrev_b32 v8, 6, v0')
    b.add('v_lshlrev_b32 v8, 4, v8')
    b.add('s_lshl_b32 s91, s2, 6')
    b.add('v_add_u32 v8, s91, v8')
    b.add('buffer_store_dwordx4 v[4:7], v8, s[92:95], 0 offen')


def stamp(k):
    x = I(f's_memtime s[{60+2*k}:{61+2*k}]')
    x.kind = 'ctl'; x.rd = set(); x.wr = set()
    return x


def stamps_out(b, n, ptr_off=WS_TS + (8 << 20)):
    b.add('s_waitcnt vmcnt(0) lgkmcnt(0)')
    b.add(f's_load_dwordx2 s[4:5], s[0:1], {KA_WS}')
    b.add('s_waitcnt lgkmcnt(0)')
    b.add(f's_add_u32 s4, s4, {ptr_off}')
    b.add('s_addc_u32 s5, s5, 0')
    b.add('s_mov_b32 s6, 0x1000000')
    b.add('s_mov_b32 s7, 0x00020000')
    b.add('v_lshrrev_b32 v8, 6, v0')
    b.add('v_lshlrev_b32 v8, 7, v8')
    b.add('s_lshl_b32 s8, s2, 9')
    b.add('v_add_u32 v8, s8, v8')
    for k in range(n):
        b.add(f'v_mov_b32 v4, s{60+2*k}')
        b.add(f'buffer_store_dword v4, v8, s[4:7], 0 offen offset:{4*k}')

WS_CS = WS_ST + (1 << 20)
WS_R2 = WS_ST + (512 << 10)
```

```python
from common import *

NAME = 'kv_kernel'
LDS_W = 0
LDS_C = 65536
LDS_BYTES = 65536 + 4 * 24576


def gen(store_mod='sc1', mapping='8x4', ln=True, NRING=8, LOOK=4, ts=False, st_=False, nobar=False, nodma=False):
    sC, sWK, sWV, sX, sO = 16, 20, 24, 28, 32
    sW, sH, sKB = 36, 37, 38
    sWM, sCM = 39, 40
    sSO = 41
    sK4 = 44
    sCO = 52
    sT = 54

    def accK(nt, kt): return (nt * 2 + kt) * 16
    def accV(p, dt, kt): return (128 if p == 0 else 0) + (dt * 2 + kt) * 16
    def cfr(kt, S): return (S * 2 + kt) * 4
    vWF = 192
    vRK, vRV, vDK, vDV, vST = 224, 228, 230, 234, 238
    vTMP = 240
    vL = 248
    vRC, vDC = 128, 132

    P = Block()
    P.add('s_cmp_ge_u32 s2, 256')
    P.add('s_cbranch_scc1 K1_END')
    if ts:
        ts_begin(P)
        P.add('v_mov_b32 v255, v0')
    P.add(f's_load_dwordx2 s[4:5], s[0:1], {KA_X}')
    P.add(f's_load_dwordx2 s[6:7], s[0:1], {KA_CKV}')
    P.add(f's_load_dwordx4 s[8:11], s[0:1], {KA_WUK}')
    P.add(f's_load_dwordx2 s[12:13], s[0:1], {KA_WS}')
    l, w, t0, t1, t2, t3 = vL, vL + 1, vL + 2, vL + 3, vL + 4, vL + 5
    P.add(f'v_and_b32 v{l}, 63, v0')
    P.add(f'v_lshrrev_b32 v{w}, 6, v0')
    P.add(f'v_readfirstlane_b32 s{sW}, v{w}')
    P.add(f's_and_b32 s{sT}, s2, 7')
    P.add(f's_lshr_b32 s{sT+1}, s2, 3')
    if mapping == '8x4':
        P.add(f's_and_b32 s{sH}, s{sT}, 3')
        P.add(f's_lshl_b32 s{sH}, s{sH}, 3')
        P.add(f's_and_b32 s{sT+2}, s{sT+1}, 7')
        P.add(f's_add_u32 s{sH}, s{sH}, s{sT+2}')
        P.add(f's_lshr_b32 s{sKB}, s{sT}, 2')
        P.add(f's_lshl_b32 s{sKB}, s{sKB}, 2')
        P.add(f's_lshr_b32 s{sT+2}, s{sT+1}, 3')
        P.add(f's_add_u32 s{sKB}, s{sKB}, s{sT+2}')
    else:
        P.add(f's_lshl_b32 s{sH}, s{sT}, 2')
        P.add(f's_and_b32 s{sT+2}, s{sT+1}, 3')
        P.add(f's_add_u32 s{sH}, s{sH}, s{sT+2}')
        P.add(f's_lshr_b32 s{sKB}, s{sT+1}, 2')
    P.add(f's_lshl_b32 s{sWM}, s{sW}, 12')
    P.add(f's_mul_i32 s{sCM}, s{sW}, 24576')
    P.add(f's_add_u32 s{sCM}, s{sCM}, {LDS_C}')
    for k in range(1, 8):
        P.add(f's_movk_i32 s{sK4+k-1}, {4096*k}')
    P.add(f's_lshl_b32 s{sT}, s{sKB}, 2')
    P.add(f's_add_u32 s{sT}, s{sT}, s{sW}')
    P.add(f's_lshl_b32 s{sT+1}, s{sT}, 16')
    P.add(f'v_lshrrev_b32 v{t0}, 3, v{l}')
    P.add(f'v_lshlrev_b32 v{t0}, 10, v{t0}')
    P.add(f'v_add_u32 v{t0}, s{sT+1}, v{t0}')
    P.add(f'v_and_b32 v{t1}, 7, v{l}')
    P.add(f'v_lshrrev_b32 v{t2}, 4, v{l}')
    P.add(f'v_xor_b32 v{t1}, v{t1}, v{t2}')
    P.add(f'v_lshlrev_b32 v{t3}, 4, v{t1}')
    P.add(f'v_add_u32 v{vDC}, v{t0}, v{t3}')
    P.add(f'v_xor_b32 v{t3}, 64, v{t3}')
    P.add(f'v_add_u32 v{vDC+1}, v{t0}, v{t3}')
    for i in range(7, 0, -1):
        P.add(f'v_add_u32 v{vDC+i}, {8192*i - 1024*(i&3)}, v{vDC+(i&1)}')
    P.add(f's_lshl_b32 s{sT+2}, s{sH}, 8')
    P.add(f's_lshl_b32 s{sT+3}, s{sW}, 17')
    P.add(f's_add_u32 s{sT+3}, s{sT+3}, s{sT+2}')
    P.add(f'v_lshlrev_b32 v{t0}, 13, v{t2}')
    P.add(f'v_add_u32 v{t0}, s{sT+3}, v{t0}')
    P.add(f'v_and_b32 v{t1}, 15, v{l}')
    P.add(f'v_lshlrev_b32 v{t3}, 2, v{t2}')
    P.add(f'v_xor_b32 v{t1}, v{t1}, v{t3}')
    P.add(f'v_lshlrev_b32 v{t1}, 4, v{t1}')
    P.add(f'v_add_u32 v{vDK}, v{t0}, v{t1}')
    for i in range(1, 4):
        P.add(f'v_add_u32 v{vDK+i}, {(32768-1024)*i}, v{vDK}')
    P.add(f's_lshl_b32 s{sT+3}, s{sW}, 18')
    P.add(f's_add_u32 s{sT+3}, s{sT+3}, s{sT+2}')
    P.add(f'v_lshrrev_b32 v{t0}, 3, v{l}')
    P.add(f'v_lshlrev_b32 v{t0}, 13, v{t0}')
    P.add(f'v_add_u32 v{t0}, s{sT+3}, v{t0}')
    P.add(f'v_and_b32 v{t1}, 1, v{t2}')
    P.add(f'v_lshlrev_b32 v{t1}, 2, v{t1}')
    P.add(f'v_and_b32 v{t3}, 7, v{l}')
    P.add(f'v_xor_b32 v{t1}, v{t1}, v{t3}')
    P.add(f'v_lshlrev_b32 v{t1}, 4, v{t1}')
    P.add(f'v_add_u32 v{vDV}, v{t0}, v{t1}')
    for i in range(1, 4):
        P.add(f'v_add_u32 v{vDV+i}, {(65536-1024)*i}, v{vDV}')
    srd(P, sC, 6, 2097152)
    srd(P, sWK, 8, 4194304)
    srd(P, sWV, 10, 4194304)
    srd(P, sX, 4, 2359296)
    srd(P, sO, 12, WS_XN + 64 * 36 * 1024)

    def dmaC(chunk):
        slot = chunk % 3
        out = []
        out.append(I(f's_add_u32 m0, s{sCM}, {slot*8192}'))
        out.append(I(f's_movk_i32 s{sCO}, {chunk*128}'))
        for i in range(8):
            if i == 4:
                out.append(I(f's_add_u32 m0, s{sCM}, {slot*8192+4096}'))
            out.append(I(f'buffer_load_dwordx4 v{vDC+i}, s[{sC}:{sC+3}], s{sCO} offen offset:{1024*(i&3)} lds',
                         grp='C', newgrp=(i == 0)))
        return out

    def dmaW(st):
        slot = st % 4
        out = [I(f's_add_u32 m0, s{sWM}, {slot*16384}')]
        if st < 8:
            out.append(I(f's_mov_b32 s{sSO}, {st*524288}'))
            vo, sd = vDK, sWK
        else:
            p, q = (st - 8) // 4, (st - 8) % 4
            out.append(I(f's_mov_b32 s{sSO}, {q*128*8192 + p*128}'))
            vo, sd = vDV, sWV
        for i in range(4):
            out.append(I(f'buffer_load_dwordx4 v{vo+i}, s[{sd}:{sd+3}], s{sSO} offen offset:{1024*i} lds',
                         grp='W', newgrp=(i == 0)))
        return out

    P.add(dmaC(0)); P.add(dmaW(0)); P.add(dmaW(1)); P.add(dmaC(1)); P.add(dmaW(2)); P.add(dmaC(2))
    r = t0
    P.add(f'v_bfe_u32 v{r}, v{l}, 2, 2')
    P.add(f'v_lshrrev_b32 v{t1}, 5, v{l}')
    P.add(f'v_lshl_add_u32 v{t1}, v{t1}, 3, v{r}')
    P.add(f'v_bfe_u32 v{t2}, v{l}, 4, 1')
    P.add(f'v_lshlrev_b32 v{t2}, 5, v{t2}')
    P.add(f'v_and_b32 v{t3}, 3, v{l}')
    P.add(f'v_lshl_add_u32 v{t2}, v{t3}, 3, v{t2}')
    P.add(f'v_lshl_add_u32 v{t3}, v{t1}, 8, v{t2}')
    for nt in range(4):
        P.add(f'v_xor_b32 v{vRK+nt}, {nt}, v{r}')
        P.add(f'v_lshl_add_u32 v{vRK+nt}, v{vRK+nt}, 6, v{t3}')
    P.add(f'v_lshl_add_u32 v{t3}, v{t1}, 7, v{t2}')
    P.add(f'v_lshrrev_b32 v{r}, 1, v{r}')
    for dt in range(2):
        P.add(f'v_xor_b32 v{vRV+dt}, {dt}, v{r}')
        P.add(f'v_lshl_add_u32 v{vRV+dt}, v{vRV+dt}, 6, v{t3}')
    P.add(f'v_and_b32 v{t1}, 31, v{l}')
    P.add(f'v_lshlrev_b32 v{t2}, 7, v{t1}')
    P.add(f'v_add_u32 v{t2}, s{sCM}, v{t2}')
    P.add(f'v_bfe_u32 v{t1}, v{l}, 1, 3')
    P.add(f'v_lshrrev_b32 v{t3}, 5, v{l}')
    P.add(f'v_xor_b32 v{t1}, v{t1}, v{t3}')
    for ks in range(4):
        P.add(f'v_xor_b32 v{vRC+ks}, {2*ks}, v{t1}')
        P.add(f'v_lshl_add_u32 v{vRC+ks}, v{vRC+ks}, 4, v{t2}')
    P.add(f's_lshl_b32 s{sT+2}, s{sH}, 5')
    P.add(f's_add_u32 s{sT+2}, s{sT+2}, s{sT}')
    P.add(f's_lshl_b32 s{sT+2}, s{sT+2}, 15')
    P.add(f'v_lshlrev_b32 v{vST}, 4, v{l}')
    P.add(f'v_add_u32 v{vST}, s{sT+2}, v{vST}')

    def rdC(chunk):
        slot = chunk % 3
        out = []
        for ks in range(4):
            for kt in range(2):
                out.append(I(f'ds_read_b128 {ar(cfr(kt, chunk*4+ks), 4)}, v{vRC+ks} offset:{slot*8192 + kt*4096}',
                             grp='Cr', newgrp=(ks == 0 and kt == 0)))
        return out

    def rdW(F):
        st, f = F // 16, F % 16
        slot = st % 4
        dst = vWF + (F % NRING) * 4
        if st < 8:
            ks, nt = f // 4, f % 4
            a, off, h2 = vRK + nt, slot * 16384 + ks * 4096, 1024
        else:
            ks, dt = f // 2, f % 2
            a, off, h2 = vRV + dt, slot * 16384 + ks * 2048, 512
        return [I(f'ds_read_b64_tr_b16 {vr(dst, 2)}, v{a} offset:{off}'),
                I(f'ds_read_b64_tr_b16 {vr(dst+2, 2)}, v{a} offset:{off+h2}')]

    P.need(('C', 'abs', 0))
    P.add(rdC(0))
    P.need(('W', 'abs', 0))
    P.add('s_barrier')
    for F in range(LOOK):
        P.add(rdW(F))

    S = Sched()
    for st in range(16):
        g0 = st * 32
        for f in range(16):
            F = st * 16 + f
            wf = vr(vWF + (F % NRING) * 4, 4)
            for kt in range(2):
                if st < 8:
                    ks, nt = f // 4, f % 4
                    acc = vr(accK(nt, kt), 16)
                    first = (st == 0 and ks == 0)
                    S.mf(f'v_mfma_f32_32x32x16_bf16 {acc}, {wf}, {ar(cfr(kt, st*4+ks), 4)}, {"0" if first else acc}')
                else:
                    p, q = (st - 8) // 4, (st - 8) % 4
                    ks, dt = f // 2, f % 2
                    acc = vr(accV(p, dt, kt), 16)
                    first = (q == 0 and ks == 0)
                    S.mf(f'v_mfma_f32_32x32x16_bf16 {acc}, {ar(cfr(kt, q*8+ks), 4)}, {wf}, {"0" if first else acc}')
            if F + LOOK < 256:
                a, b = rdW(F + LOOK)
                nxt_stage = (F + LOOK) // 16 > st
                S.at(g0 + 2 * f, a)
                S.at(g0 + 2 * f + 1, b)
        gb = g0 + 2 * (16 - LOOK) - 6
        if st + 1 < 16:
            S.at(gb, I('', need=[('W', 'abs', st + 1)]), prio=5)
            S.at(gb, I('s_barrier'), prio=5)
            if st + 3 < 16:
                d = dmaW(st + 3)
                S.at(gb + 1, d[0:2])
                for i in range(4):
                    S.at(gb + 2 + 2 * i, d[2 + i])
        if st < 7:
            rc = rdC(st + 1)
            S.at(g0 + 14, I('', need=[('C', 'abs', st + 1)]), prio=-1)
            rc_g = [g0 + 14 + 2 * i for i in range(8)]
            for i in range(8):
                S.at(rc_g[i], rc[i])
            if st + 3 <= 7:
                d = dmaC(st + 3)
                gs = g0 + 2
                S.at(gs, I('', need=[('Cr', 'abs', st)]), prio=0)
                k = 0
                S.at(gs, d[0:2], prio=0)
                idx = 2
                gg = gs + 1
                for i in range(8):
                    if i == 4:
                        S.at(gg - 1, d[idx]); idx += 1
                    S.at(gg, d[idx]); idx += 1
                    gg += 2
    tmp = [0]

    def drain(base, fidx):
        t = vTMP + 4 * (tmp[0] % 2)
        tmp[0] += 1
        out = [I(f'v_cvt_pk_bf16_f32 v{t+j}, v{base+2*j}, v{base+2*j+1}') for j in range(4)]
        so = '0' if fidx < 4 else f's{sK4 + fidx // 4 - 1}'
        out.append(I(f'buffer_store_dwordx4 {vr(t,4)}, v{vST}, s[{sO}:{sO+3}], {so} offen offset:{(fidx%4)*1024} {store_mod}'))
        return out

    items = []
    for nt in (2, 3, 0, 1):
        for kt in range(2):
            for rg in range(2):
                items.append(drain(accK(nt, kt) + 8 * rg, kt * 8 + 2 * nt + rg))
    g = 8 * 32 + 1
    for k, it in enumerate(items):
        gg = g + k * 8 - (1 if k else 0) * 0
        for j in range(4):
            S.at(gg + j, it[j])
        S.at(gg + 5, it[4])
    items = []
    for dt in range(2):
        for kt in range(2):
            for rg in range(2):
                items.append(drain(accV(0, dt, kt) + 8 * rg, 16 + dt * 4 + 2 * kt + rg))
    g = 12 * 32 + 1
    for k, it in enumerate(items):
        gg = g + k * 14
        for j in range(4):
            S.at(gg + j, it[j])
        S.at(gg + 5, it[4])

    if ln:
        vX, vU = 64, 76
        vS1, vS2, vA, vB = 100, 101, 102, 103
        vXO, vSO, vLA = 104, 105, 106
        vP = 108
        vO = 116
        q = []
        q.append(f's_min_u32 s{sT}, s{sW}, 2')
        q.append(f's_mul_i32 s{sT+1}, s{sT}, 384')
        q.append(f's_mul_i32 s{sT+2}, s2, {8*1152}')
        q.append(f's_add_u32 s{sT+1}, s{sT+1}, s{sT+2}')
        q.append(f'v_and_b32 v{vA}, 7, v{l}')
        q.append(f'v_lshrrev_b32 v{vB}, 3, v{l}')
        q.append(f'v_mul_u32_u24 v{vXO}, 1152, v{vA}')
        q.append(f'v_lshl_add_u32 v{vXO}, v{vB}, 4, v{vXO}')
        q.append(f'v_add_u32 v{vXO}, s{sT+1}, v{vXO}')
        for i in range(3):
            q.append(f'buffer_load_dwordx4 {vr(vX+4*i,4)}, v{vXO}, s[{sX}:{sX+3}], 0 offen offset:{128*i}')
        q.append(f's_lshr_b32 s{sT+1}, s2, 2')
        q.append(f's_mul_i32 s{sT+1}, s{sT+1}, 36864')
        q.append(f's_mul_i32 s{sT+2}, s{sT}, 12288')
        q.append(f's_add_u32 s{sT+1}, s{sT+1}, s{sT+2}')
        q.append(f's_and_b32 s{sT+2}, s2, 3')
        q.append(f's_lshl_b32 s{sT+2}, s{sT+2}, 7')
        q.append(f's_add_u32 s{sT+1}, s{sT+1}, s{sT+2}')
        q.append(f's_add_u32 s{sT+1}, s{sT+1}, {WS_XN}')
        q.append(f'v_lshrrev_b32 v{vSO}, 1, v{vB}')
        q.append(f'v_lshlrev_b32 v{vSO}, 10, v{vSO}')
        q.append(f'v_and_b32 v{vB}, 1, v{vB}')
        q.append(f'v_lshl_add_u32 v{vSO}, v{vB}, 9, v{vSO}')
        q.append(f'v_lshl_add_u32 v{vSO}, v{vA}, 4, v{vSO}')
        q.append(f'v_add_u32 v{vSO}, s{sT+1}, v{vSO}')
        q.append(f'v_lshlrev_b32 v{vLA}, 3, v{vA}')
        q.append(f'v_add_u32 v{vLA}, {LDS_C}, v{vLA}')
        q.append(f's_lshl_b32 s{sT+2}, s{sW}, 6')
        q.append(f'v_add_u32 v{vLA+1}, s{sT+2}, v{vLA}')
        S.pack([I(x) for x in q], 10 * 32 + 2, 11 * 32 + 20, cap=3)
        q = []
        for j in range(12):
            q.append(f'v_lshlrev_b32 v{vU+2*j}, 16, v{vX+j}')
            q.append(f'v_and_b32 v{vU+2*j+1}, 0xffff0000, v{vX+j}')
        q.append(f'v_add_f32 v{vS1}, v{vU}, v{vU+1}')
        q.append(f'v_mul_f32 v{vS2}, v{vU}, v{vU}')
        q.append(f'v_fmac_f32 v{vS2}, v{vU+1}, v{vU+1}')
        for j in range(2, 24):
            q.append(f'v_add_f32 v{vS1}, v{vS1}, v{vU+j}')
            q.append(f'v_fmac_f32 v{vS2}, v{vU+j}, v{vU+j}')
        for sx in (vS1, vS2):
            q.append(f'v_add_f32_dpp v{sx}, v{sx}, v{sx} row_ror:8 row_mask:0xf bank_mask:0xf')
        for sw in ('v_permlane16_swap_b32', 'v_permlane32_swap_b32'):
            q.append(f'v_mov_b32 v{vA}, v{vS1}')
            q.append(f'v_mov_b32 v{vB}, v{vS2}')
            q.append(f'{sw} v{vA}, v{vS1}')
            q.append(f'{sw} v{vB}, v{vS2}')
            q.append(f'v_add_f32 v{vS1}, v{vS1}, v{vA}')
            q.append(f'v_add_f32 v{vS2}, v{vS2}, v{vB}')
        q.append(f'ds_write_b64 v{vLA+1}, {vr(vS1,2)}')
        gl = S.pack([I(x) for x in q], 12 * 32 + 0, 13 * 32 + 14, cap=4)
        assert gl < 13 * 32 + 2 * (16 - LOOK) - 6, gl
        gb13 = 13 * 32 + 2 * (16 - LOOK) - 6
        S.at(gb13, I('', need=[('lgkm', 0)]), prio=4)
        q = []
        for k in range(3):
            q.append(f'ds_read_b64 {vr(vP+2*k,2)}, v{vLA} offset:{64*k}')
        q.append(f'v_add_f32 v{vS1}, v{vP}, v{vP+2}')
        q.append(f'v_add_f32 v{vS2}, v{vP+1}, v{vP+3}')
        q.append(f'v_add_f32 v{vS1}, v{vS1}, v{vP+4}')
        q.append(f'v_add_f32 v{vS2}, v{vS2}, v{vP+5}')
        q.append(f'v_mul_f32 v{vS1}, {1.0/576!r}, v{vS1}')
        q.append(f'v_mul_f32 v{vS2}, {1.0/576!r}, v{vS2}')
        q.append(f'v_fma_f32 v{vS2}, -v{vS1}, v{vS1}, v{vS2}')
        q.append(f'v_max_f32 v{vS2}, 0, v{vS2}')
        q.append(f'v_add_f32 v{vS2}, {1e-5!r}, v{vS2}')
        q.append(f'v_rsq_f32 v{vS2}, v{vS2}')
        q.append(f'v_mul_f32 v{vS2}, {XN_SCALE!r}, v{vS2}')
        q.append(f'v_mul_f32 v{vS1}, v{vS1}, v{vS2}')
        for i in range(3):
            for j in range(4):
                k = (4 * i + j) * 2
                q.append(f'v_fma_f32 v{vU+k}, v{vU+k}, v{vS2}, -v{vS1}')
                q.append(f'v_fma_f32 v{vU+k+1}, v{vU+k+1}, v{vS2}, -v{vS1}')
                q.append(f'v_cvt_pk_bf16_f32 v{vO+4*i+j}, v{vU+k}, v{vU+k+1}')
            so = '0' if i == 0 else f's{sK4+i-1}'
            q.append(f'buffer_store_dwordx4 {vr(vO+4*i,4)}, v{vSO}, s[{sO}:{sO+3}], {so} offen {store_mod}')
        S.pack([I(x) for x in q], gb13 + 2, 16 * 32 - 2, cap=4)

    if st_:
        for st in range(16):
            S.at(st * 32 - 1, stamp(st + 1), prio=9)
        P.insert(2, stamp(0))
    M = S.block()
    E = Block()
    for dt in range(2):
        for kt in range(2):
            for rg in range(2):
                E.add(drain(accV(1, dt, kt) + 8 * rg, 16 + (2 + dt) * 4 + 2 * kt + rg))
    if st_:
        E.add(stamp(17 - 1 + 0)) if False else None
    if ts:
        E.add('v_mov_b32 v0, v255')
        ts_end(E, 0)
    if st_:
        stamps_out(E, 17)
    E.add('K1_END:')
    E.add('s_endpgm')
    blocks = [P, M, E]
    resolve_waits([blocks])
    resolve_hazards([blocks], name='K1')
    print('K1 estimate (cycles, mfma, overfull gaps):', estimate(P), estimate(M), estimate(E))
    return kernel_text(NAME, blocks, vgpr=512, acc=256)


if __name__ == '__main__':
    open('k1.s', 'w').write(gen(ts=True, st_=True))
```

```python
from common import *

NAME = 'attn_kernel'
LDS_BYTES = 163840
WQ_RING = 98304
NEG_BIG = -1.0e30


def gen(store_mod='sc1', ts=False, fallback_on=True, st_=False):
    sWQ, sXN, sKV, sCT = 16, 20, 24, 28
    sW, sH, sJ = 36, 37, 38
    sWM = 39
    sSO = 40
    sKM = 41
    s4096, s32K = 42, 43
    sU = 44
    sF1, sF2 = 45, 46
    sCnt = 47
    sT = 48
    sXO = 56
    QA, QB = 0, 32
    S0, S1 = 64, 96
    P0, P1 = 128, 144
    MA, MB = 160, 176
    TB_, CM = 192, 208
    vl, vLA, vLB = 224, 225, 226
    vKa, vKb = 227, 228
    vKD = 229
    vT = 230
    vRK, vDK, vXA = 240, 244, 248
    OA, OB = 0, 64
    RING = 128

    def Q(b): return QA if b == 0 else QB
    def O(b): return OA if b == 0 else OB
    def M(b): return MA if b == 0 else MB
    def L(b): return vLA if b == 0 else vLB

    P = Block()
    P.add('s_cmp_ge_u32 s2, 256')
    P.add('s_cbranch_scc1 K2_END')
    if ts:
        ts_begin(P)
        P.add('v_mov_b32 v255, v0')
    if st_:
        P.add(stamp(0))
    P.add(f's_load_dwordx2 s[4:5], s[0:1], {KA_WQ}')
    P.add(f's_load_dwordx2 s[6:7], s[0:1], {KA_WS}')
    l, t0, t1, t2, t3 = vl, vT, vT + 1, vT + 2, vT + 3
    P.add(f'v_and_b32 v{l}, 63, v0')
    P.add(f'v_lshrrev_b32 v{t0}, 6, v0')
    P.add(f'v_readfirstlane_b32 s{sW}, v{t0}')
    P.add(f's_and_b32 s{sT}, s2, 7')
    P.add(f's_lshr_b32 s{sT+1}, s2, 3')
    P.add(f's_lshl_b32 s{sH}, s{sT}, 2')
    P.add(f's_and_b32 s{sT+2}, s{sT+1}, 3')
    P.add(f's_add_u32 s{sH}, s{sH}, s{sT+2}')
    P.add(f's_lshr_b32 s{sJ}, s{sT+1}, 2')
    P.add(f's_lshl_b32 s{sWM}, s{sW}, 12')
    P.add(f's_add_u32 s{sWM}, s{sWM}, {WQ_RING}')
    P.add(f's_lshl_b32 s{sKM}, s{sW}, 13')
    P.add(f's_movk_i32 s{s4096}, 4096')
    P.add(f's_mov_b32 s{s32K}, 32768')
    P.add(f's_lshl_b32 s{sT+2}, s{sH}, 8')
    P.add(f's_lshl_b32 s{sT+3}, s{sW}, 17')
    P.add(f's_add_u32 s{sT+3}, s{sT+3}, s{sT+2}')
    P.add(f'v_lshrrev_b32 v{t2}, 4, v{l}')
    P.add(f'v_lshlrev_b32 v{t0}, 13, v{t2}')
    P.add(f'v_add_u32 v{t0}, s{sT+3}, v{t0}')
    P.add(f'v_and_b32 v{t1}, 15, v{l}')
    P.add(f'v_lshlrev_b32 v{t3}, 2, v{t2}')
    P.add(f'v_xor_b32 v{t1}, v{t1}, v{t3}')
    P.add(f'v_lshlrev_b32 v{t1}, 4, v{t1}')
    P.add(f'v_add_u32 v{vDK}, v{t0}, v{t1}')
    for i in range(1, 4):
        P.add(f'v_add_u32 v{vDK+i}, {(32768-1024)*i}, v{vDK}')
    P.add(f's_lshl_b32 s{sT+2}, s{sJ}, 2')
    P.add(f's_add_u32 s{sT+3}, s{sT+2}, s{sW}')
    P.add(f's_sub_u32 s{sT+4}, 60, s{sT+2}')
    P.add(f's_add_u32 s{sT+4}, s{sT+4}, s{sW}')
    P.add(f's_mul_i32 s{sT+5}, s{sT+3}, 36864')
    P.add(f's_mul_i32 s{sT+6}, s{sT+4}, 36864')
    P.add(f'v_lshlrev_b32 v{t0}, 4, v{l}')
    P.add(f'v_add_u32 v{vXA}, s{sT+5}, v{t0}')
    P.add(f'v_add_u32 v{vXA+1}, s{sT+6}, v{t0}')
    P.add(f'v_add_u32 v{vKD}, s{sKM}, v{t0}')
    P.add(f'v_mov_b32 v{vKb}, v{t0}')
    P.add(f'v_mov_b32 v{vKa}, v{t0}')
    srd(P, sWQ, 4, 576 * 8192)
    srd(P, sXN, 6, 64 * 36864, off=WS_XN)
    P.add(f's_lshl_b32 s{sT+2}, s{sH}, 20')
    P.add(f's_add_u32 s{sKV}, s6, s{sT+2}')
    P.add(f's_addc_u32 s{sKV+1}, s7, 0')
    P.add(f's_lshl_b32 s{sT+2}, s{sJ}, 16')
    P.add(f's_sub_u32 s{sKV+2}, {32*32768}, s{sT+2}')
    P.add(f's_mov_b32 s{sKV+3}, 0x00020000')
    srd(P, sCT, 6, 16 << 20, off=WS_CTX)

    def dmaW(c):
        out = [I(f's_add_u32 m0, s{sWM}, {(c % 4) * 16384}'),
               I(f's_mov_b32 s{sSO}, {c * 524288}')]
        for i in range(4):
            out.append(I(f'buffer_load_dwordx4 v{vDK+i}, s[{sWQ}:{sWQ+3}], s{sSO} offen offset:{1024*i} lds',
                         grp='W', newgrp=(i == 0)))
        return out

    def xfr(c, ks, b): return RING + (c % 4) * 32 + (ks * 2 + b) * 4

    def ldX(c):
        out = [I(f's_movk_i32 s{sXO}, {c * 4096}')] if c * 4096 < 32768 else [I(f's_mov_b32 s{sXO}, {c * 4096}')]
        for ks in range(4):
            for b in range(2):
                out.append(I(f'buffer_load_dwordx4 {ar(xfr(c, ks, b), 4)}, v{vXA+b}, s[{sXN}:{sXN+3}], s{sXO} offen offset:{1024*ks}'))
        return out

    def dmaKV():
        out = [I(f's_mov_b32 m0, s{sKM}')]
        for i in range(8):
            if i == 4:
                out.append(I(f's_add_u32 m0, s{sKM}, 4096'))
            so = '0' if i < 4 else f's{s4096}'
            out.append(I(f'buffer_load_dwordx4 v{vKD}, s[{sKV}:{sKV+3}], {so} offen offset:{1024*(i&3)} lds',
                         grp='KV', newgrp=(i == 0)))
        out.append(I(f'v_add_u32 v{vKD}, s{s32K}, v{vKD}'))
        out.append(I(f's_add_u32 s{sKM}, s{sKM}, s{s32K}'))
        out.append(I(f's_and_b32 s{sKM}, s{sKM}, 0x1ffff'))
        return out

    P.add(dmaW(0)); P.add(ldX(0)); P.add(dmaW(1)); P.add(ldX(1)); P.add(dmaW(2)); P.add(ldX(2))
    r = t0
    P.add(f'v_bfe_u32 v{r}, v{l}, 2, 2')
    P.add(f'v_lshrrev_b32 v{t1}, 5, v{l}')
    P.add(f'v_lshl_add_u32 v{t1}, v{t1}, 3, v{r}')
    P.add(f'v_bfe_u32 v{t2}, v{l}, 4, 1')
    P.add(f'v_lshlrev_b32 v{t2}, 5, v{t2}')
    P.add(f'v_and_b32 v{t3}, 3, v{l}')
    P.add(f'v_lshl_add_u32 v{t2}, v{t3}, 3, v{t2}')
    P.add(f'v_lshl_add_u32 v{t3}, v{t1}, 8, v{t2}')
    P.add(f'v_add_u32 v{t3}, {WQ_RING}, v{t3}')
    for nt in range(4):
        P.add(f'v_xor_b32 v{vRK+nt}, {nt}, v{r}')
        P.add(f'v_lshl_add_u32 v{vRK+nt}, v{vRK+nt}, 6, v{t3}')

    QACC = 64
    WF = 192
    LOOK = 4

    def qacc(nt, b): return QACC + (nt * 2 + b) * 16

    def rdW(F):
        c, f = F // 16, F % 16
        dst = WF + (F % 8) * 4
        ks, nt = f // 4, f % 4
        off = (c % 4) * 16384 + ks * 4096
        return [I(f'ds_read_b64_tr_b16 {vr(dst, 2)}, v{vRK+nt} offset:{off}'),
                I(f'ds_read_b64_tr_b16 {vr(dst+2, 2)}, v{vRK+nt} offset:{off+1024}')]

    P.need(('W', 'abs', 0))
    P.add('s_barrier')
    for F in range(LOOK):
        P.add(rdW(F))
    S = Sched()
    for c in range(9):
        g0 = c * 32
        for f in range(16):
            F = c * 16 + f
            wf = vr(WF + (F % 8) * 4, 4)
            ks, nt = f // 4, f % 4
            for b in range(2):
                acc = vr(qacc(nt, b), 16)
                first = (c == 0 and ks == 0)
                S.mf(f'v_mfma_f32_32x32x16_bf16 {acc}, {wf}, {ar(xfr(c, ks, b), 4)}, {"0" if first else acc}')
            if F + LOOK < 144:
                a, b_ = rdW(F + LOOK)
                S.at(g0 + 2 * f, a)
                S.at(g0 + 2 * f + 1, b_)
        gb = g0 + 2 * (16 - LOOK) - 6
        if c + 1 < 9:
            S.at(gb, I('', need=[('W', 'abs', c + 1)]), prio=5)
            S.at(gb, I('s_barrier'), prio=5)
            if c + 3 < 9:
                d = dmaW(c + 3)
                S.at(gb + 1, d[0:2])
                for i in range(4):
                    S.at(gb + 2 + 2 * i, d[2 + i])
        else:
            S.at(gb, I('', need=[('KV', 'abs', 0)]), prio=5)
            S.at(gb, I('s_barrier'), prio=5)
        if c + 3 < 9:
            d = ldX(c + 3)
            S.at(g0 + 1, d[0])
            for i in range(8):
                S.at(g0 + 2 + 2 * i, d[1 + i])
        if c in (6, 7, 8):
            d = dmaKV()
            g = g0 + 1
            for x in d:
                S.at(g, x, prio=1)
                if x.kind == 'vmem':
                    g += 2
    QP = S.block()

    A1 = Block()
    if st_:
        A1.add(stamp(1))
    for p in range(8):
        A1.add(f'ds_read_b128 {ar(RING + 4*p, 4)}, v{vKb} offset:{1024*p}')
    for b in range(2):
        for nt in range(4):
            for rg in range(2):
                src = qacc(nt, b) + 8 * rg
                for jj in range(4):
                    A1.add(f'v_cvt_pk_bf16_f32 v{Q(b) + (2*nt+rg)*4 + jj}, v{src+2*jj}, v{src+2*jj+1}')
    A1.add(f'v_and_b32 v{t0}, 31, v{l}')
    A1.add(f'v_lshrrev_b32 v{t1}, 5, v{l}')
    A1.add(f'v_lshlrev_b32 v{t1}, 2, v{t1}')
    A1.add(f'v_sub_u32 v{t0}, v{t0}, v{t1}')
    A1.add(f'v_mov_b32 v{t1}, {NEG_BIG!r}')
    for rr in range(16):
        row = (rr & 3) + 8 * (rr >> 2)
        A1.add(f'v_cmp_lt_i32 vcc, v{t0}, {row}') if False else A1.add(f'v_cmp_gt_i32 vcc, {row}, v{t0}')
        A1.add(f'v_cndmask_b32 v{TB_+rr}, 0, v{t1}, vcc')
    A1.add(f's_or_b32 s{sT}, s{sJ}, s{sW}')
    A1.add(f's_cmp_eq_u32 s{sT}, 0')
    A1.add(f's_cselect_b32 s{sF1}, 1.0, 0')
    for rr in range(16):
        A1.add(f'v_mul_f32 v{CM+rr}, s{sF1}, v{TB_+rr}')
    for ks in range(8):
        for b in range(2):
            d = vr(S0 + 16 * b, 16)
            c_ = (vr(CM, 16) if b == 0 else '0') if ks == 0 else d
            A1.add(f'v_mfma_f32_32x32x16_bf16 {d}, {ar(RING + 4*ks, 4)}, {vr(Q(b) + 4*ks, 4)}, {c_}')
    for b in range(2):
        s_ = S0 + 16 * b
        m_ = vT + 4 + b
        A1.add(f'v_max3_f32 v{m_}, v{s_}, v{s_+1}, v{s_+2}')
        for k in range(3, 15, 2):
            A1.add(f'v_max3_f32 v{m_}, v{m_}, v{s_+k}, v{s_+k+1}')
        A1.add(f'v_max_f32 v{m_}, v{m_}, v{s_+15}')
    A1.add(f'v_mov_b32 v{t0}, v{vT+4}')
    A1.add(f'v_mov_b32 v{t1}, v{vT+5}')
    A1.add(f'v_permlane32_swap_b32 v{t0}, v{vT+4}')
    A1.add(f'v_permlane32_swap_b32 v{t1}, v{vT+5}')
    A1.add(f'v_max_f32 v{t0}, v{t0}, v{vT+4}')
    A1.add(f'v_max_f32 v{t1}, v{t1}, v{vT+5}')
    for rr in range(16):
        A1.add(f'v_xor_b32 v{MA+rr}, 0x80000000, v{t0}') if rr == 0 else A1.add(f'v_mov_b32 v{MA+rr}, v{MA}')
    for rr in range(16):
        A1.add(f'v_xor_b32 v{MB+rr}, 0x80000000, v{t1}') if rr == 0 else A1.add(f'v_mov_b32 v{MB+rr}, v{MB}')
    A1.add(f'v_mov_b32 v{vLA}, 0')
    A1.add(f'v_mov_b32 v{vLB}, 0')
    A1.add(f's_cmp_eq_u32 s{sJ}, 0')
    A1.add(f's_cselect_b32 s{sU}, 0, -4')
    if st_:
        A1.add(stamp(2))

    def pair(sreg, preg, lreg):
        return [I(f'v_exp_f32 v{sreg}, v{sreg}'), I(f'v_exp_f32 v{sreg+1}, v{sreg+1}'),
                I(f'v_add_f32 v{lreg}, v{lreg}, v{sreg}'), I(f'v_add_f32 v{lreg}, v{lreg}, v{sreg+1}'),
                I(f'v_cvt_pk_bf16_f32 v{preg}, v{sreg}, v{sreg+1}')]

    def stream(Sb, Pb, blocks):
        out = []
        for rg in range(2):
            for b in blocks:
                for jj in range(4):
                    out.append(pair(Sb + 16 * b + 8 * rg + 2 * jj, Pb + 8 * b + 4 * rg + jj, L(b)))
        return out

    def place(S, pairs, g0, g1):
        n = len(pairs)
        if n == 0:
            return
        span = g1 - g0
        for k, pr in enumerate(pairs):
            ga = g0 + (k * span) // n
            gb_ = g0 + ((2 * k + 1) * span) // (2 * n)
            S.at(ga, pr[0:2], prio=3)
            S.at(gb_, pr[2:5], prio=3)

    def mask_build(u_off, blk):
        out = [I(f's_add_i32 s{sT}, s{sU}, {u_off}'),
               I(f's_cmp_eq_i32 s{sT}, s{sW}'),
               I(f's_cselect_b32 s{sF1}, 1.0, 0'),
               I(f's_cmp_gt_i32 s{sT}, s{sW}'),
               I(f's_cselect_b32 s{sF2}, {NEG_BIG!r}, 0'),
               I(f'v_add_f32 v{vT}, s{sF2}, v{M(blk)}')]
        for rr in range(16):
            out.append(I(f'v_fma_f32 v{CM+rr}, v{TB_+rr}, s{sF1}, v{vT}'))
        return out

    def body(xb, yb, masked=None, first=False, tail=None, head_n=None, final=False):
        S = Sched()
        pos_gap = []

        def ring(p): return ar(RING + (p % 16) * 4, 4)

        def unit_x(Sb, p0, msk):
            for ks in range(8):
                pos_gap.append(S.n())
                for b in xb:
                    d = vr(Sb + 16 * b, 16)
                    c0 = vr(CM, 16) if (msk and b == masked) else vr(M(b), 16)
                    S.mf(f'v_mfma_f32_32x32x16_bf16 {d}, {ring(p0+ks)}, {vr(Q(b)+4*ks, 4)}, {c0 if ks == 0 else d}')

        def unit_y(Pb, p0, blocks, zero):
            for rg in range(2):
                for dt in range(4):
                    pos_gap.append(S.n())
                    for b in blocks:
                        d = ar(O(b) + 16 * dt, 16)
                        S.mf(f'v_mfma_f32_32x32x16_bf16 {d}, {ring(p0+rg*4+dt)}, {vr(Pb+8*b+4*rg, 4)}, {"0" if (zero and rg == 0) else d}')

        if not final:
            unit_x(S0, 0, masked is not None)
        gX0e = S.n()
        if not first:
            if final:
                for _ in range(8): pos_gap.append(0)
            unit_y(P1, 8, yb, False)
        else:
            for _ in range(8): pos_gap.append(S.n())
        gY1e = S.n()
        if not final:
            unit_x(S1, 16, masked is not None)
            gX1e = S.n()
            unit_y(P0, 24, xb, first)
        gend = S.n()

        def rd(p, addr, off): return I(f'ds_read_b128 {ring(p)}, v{addr} offset:{off}')
        koff = lambda st, ks: (st * 8 + ks) * 1024
        voff = lambda kt, rg, dt: 16384 + (dt * 4 + 2 * kt + rg) * 1024
        if final:
            for k in range(8):
                S.at(-1, rd(8 + k, vKa, voff(1, k // 4, k % 4)))
        else:
            for k in range(8):
                if not first:
                    S.at(pos_gap[k], rd(8 + k, vKa, voff(1, k // 4, k % 4)))
                g = pos_gap[8 + k] if not first else pos_gap[k] + 1
                S.at(g, rd(16 + k, vKb, koff(1, k)))
                S.at(pos_gap[16 + k], rd(24 + k, vKb, voff(0, k // 4, k % 4)))
                S.at(pos_gap[24 + k], rd(32 + k, vKa, koff(0, k)))
            ga = pos_gap[8] if not first else pos_gap[0]
            S.at(ga + 1, I(f'v_add_u32 v{vKa}, s{s32K}, v{vKb}'), prio=3)
            S.at(ga + 2, I(f'v_and_b32 v{vKa}, 0x1ffff, v{vKa}'), prio=3)
            S.at(gend - 1, I(f'v_swap_b32 v{vKa}, v{vKb}'), prio=8)
            gb = pos_gap[16] + 1
            S.at(gb, I('', need=[('KV', 1)]), prio=5)
            S.at(gb, I('s_barrier'), prio=5)
            g = gb + 1
            step = max(1, (gend - g - 1) // 9)
            for x in dmaKV():
                S.at(g, x, prio=1)
                if x.kind == 'vmem':
                    g += step
        dual = len(xb) == 2
        if tail:
            tp, tg = tail
            place(S, tp, 0, tg) if not final else None
        if not final:
            s0 = stream(S0, P0, xb)
            s1 = stream(S1, P1, xb)
            hn = 7 if dual else 3
            if first:
                place(S, s0, gX0e + 2, gX1e + 8)
                place(S, s1[:hn], gX1e + 8, gend)
            elif len(yb) != len(xb):
                place(S, s0, gX0e + 8, gX1e)
                place(S, s1[:hn], gX1e + 2, gend)
            else:
                place(S, s0, gX0e + 2, gX1e + 2)
                place(S, s1[:hn], gX1e + 2, gend)
        B = Block()
        if masked is not None:
            B.add(mask_build(0, masked))
            mb = mask_build(1, masked)
            g = S.pack(mb, 3, gY1e if not first else gX0e, cap=6)
            S.at(gend - 1, I(f's_add_i32 s{sU}, s{sU}, 2'), prio=8)
        if final:
            for pr in tail[0][:1]:
                S.at(-1, pr, prio=3)
            for k, pr in enumerate(tail[0][1:]):
                S.at(k, pr, prio=3)
        B.extend(S.block())
        return B

    def tail_of(blocks):
        s1 = stream(S1, P1, blocks)
        return s1[7:] if len(blocks) == 2 else s1[3:]

    F0 = body([0, 1], [], masked=0, first=True)
    D = body([0, 1], [0, 1], tail=(tail_of([0, 1]), 18))
    DM = body([0, 1], [0, 1], masked=0, tail=(tail_of([0, 1]), 18))
    T = body([1], [0, 1], masked=1, tail=(tail_of([0, 1]), 15))
    SG = body([1], [1], tail=(tail_of([1]), 10))
    SM = body([1], [1], masked=1, tail=(tail_of([1]), 10))
    FN = body([1], [1], tail=(tail_of([1]), 0), final=True)

    def epilogue(b):
        E = Block()
        lr = L(b)
        tb = vT + 8
        E.add(f'v_mov_b32 v{t0}, v{lr}')
        E.add(f'v_permlane32_swap_b32 v{t0}, v{lr}')
        E.add(f'v_add_f32 v{lr}, v{lr}, v{t0}')
        E.add(f'v_rcp_f32 v{t0}, v{lr}')
        E.add(f's_lshl_b32 s{sT}, s{sJ}, 2') if b == 0 else E.add(f's_lshl_b32 s{sT}, s{sJ}, 2')
        if b == 0:
            E.add(f's_add_u32 s{sT}, s{sT}, s{sW}')
        else:
            E.add(f's_sub_u32 s{sT}, 60, s{sT}')
            E.add(f's_add_u32 s{sT}, s{sT}, s{sW}')
        E.add(f's_lshl_b32 s{sT}, s{sT}, 18')
        E.add(f's_lshl_b32 s{sT+1}, s{sH}, 12')
        E.add(f's_add_u32 s{sT}, s{sT}, s{sT+1}')
        E.add(f'v_bfe_u32 v{t1}, v{l}, 4, 1')
        E.add(f'v_lshlrev_b32 v{t1}, 17, v{t1}')
        E.add(f'v_and_b32 v{t2}, 15, v{l}')
        E.add(f'v_lshl_add_u32 v{t1}, v{t2}, 4, v{t1}')
        E.add(f'v_lshrrev_b32 v{t2}, 5, v{l}')
        E.add(f'v_lshl_add_u32 v{t1}, v{t2}, 8, v{t1}')
        E.add(f'v_add_u32 v{t1}, s{sT}, v{t1}')
        E.add(f'v_mov_b32 v{t3}, v{t0}')
        k = 0
        for dt in range(4):
            for rg in range(2):
                x = CM if (k % 2 == 0) else CM + 8
                y = TMPO + 4 * (k % 2)
                k += 1
                for jj in range(8):
                    E.add(f'v_accvgpr_read_b32 v{x+jj}, a{O(b)+16*dt+8*rg+jj}')
                for jj in range(8):
                    E.add(f'v_mul_f32 v{x+jj}, v{x+jj}, v{t0}')
                for jj in range(4):
                    E.add(f'v_cvt_pk_bf16_f32 v{y+jj}, v{x+2*jj}, v{x+2*jj+1}')
                E.add(f'buffer_store_dwordx4 {vr(y,4)}, v{t1}, s[{sCT}:{sCT+3}], 0 offen offset:{dt*1024+rg*512} {store_mod}')
        return E
    TMPO = 240

    EA = epilogue(0)
    EB = epilogue(1)


    LIM = '0x53800000'
    KF, VF, SS, CF, PP, vMx, vAd = 64, 96, 128, 144, 160, 168, 170

    def fallback(b):
        nm = 'AB'[b]
        sN, sUu, sFl, sO2 = sT + 2, sT + 3, sT + 4, sT + 5
        A = Block()
        A.add(f'K2_FB{nm}:')
        A.add('s_waitcnt vmcnt(0) lgkmcnt(0)')
        A.add(f's_lshl_b32 s{sN}, s{sJ}, 2')
        if b == 1:
            A.add(f's_sub_u32 s{sN}, 60, s{sN}')
        A.add(f's_add_u32 s{sN}, s{sN}, s{sW}')
        A.add(f'v_mov_b32 v{vMx}, {NEG_BIG!r}')
        A.add(f's_mov_b32 s{sUu}, 0')

        def addr():
            return [I(f's_lshr_b32 s{sO2}, s{sUu}, 1'),
                    I(f's_lshl_b32 s{sO2}, s{sO2}, 15'),
                    I(f's_and_b32 s{sFl}, s{sUu}, 1'),
                    I(f's_lshl_b32 s{sT}, s{sFl}, 13'),
                    I(f's_add_u32 s{sT}, s{sT}, s{sO2}'),
                    I(f'v_lshlrev_b32 v{vAd+5}, 4, v{vl}'),
                    I(f'v_add_u32 v{vAd}, s{sT}, v{vAd+5}'),
                    I(f's_lshl_b32 s{sT}, s{sFl}, 11'),
                    I(f's_add_u32 s{sT}, s{sT}, s{sO2}'),
                    I(f's_add_u32 s{sT}, s{sT}, 16384'),
                    I(f'v_add_u32 v{vAd+1}, s{sT}, v{vAd+5}'),
                    I(f'v_add_u32 v{vAd+2}, 4096, v{vAd+1}'),
                    I(f'v_add_u32 v{vAd+3}, 8192, v{vAd+1}'),
                    I(f'v_add_u32 v{vAd+4}, 12288, v{vAd+1}'),
                    I(f'v_add_u32 v{vAd+5}, 4096, v{vAd}'),
                    I(f's_cmp_eq_u32 s{sUu}, s{sN}'),
                    I(f's_cselect_b32 s{sFl}, 1.0, 0')]

        def loadK():
            return [I(f'buffer_load_dwordx4 {vr(KF+4*ks,4)}, v{vAd + (5 if ks >= 4 else 0)}, s[{sKV}:{sKV+3}], 0 offen offset:{1024*(ks&3)}')
                    for ks in range(8)]

        def scores():
            return [I(f'v_mfma_f32_32x32x16_bf16 {vr(SS,16)}, {vr(KF+4*ks,4)}, {vr(Q(b)+4*ks,4)}, {vr(CF,16) if ks == 0 else vr(SS,16)}')
                    for ks in range(8)]
        L1 = Block()
        L1.add(f'K2_FB{nm}1:')
        L1.add(addr()); L1.add(loadK())
        for rr in range(16):
            L1.add(f'v_mul_f32 v{CF+rr}, s{sFl}, v{TB_+rr}')
        L1.add(scores())
        for rr in range(0, 16, 2):
            L1.add(f'v_max3_f32 v{vMx}, v{vMx}, v{SS+rr}, v{SS+rr+1}')
        L1.add(f's_add_u32 s{sUu}, s{sUu}, 1')
        L1.add(f's_cmp_le_u32 s{sUu}, s{sN}')
        L1.add(f's_cbranch_scc1 K2_FB{nm}1')
        Mi = Block()
        Mi.add(f'v_mov_b32 v{vAd}, v{vMx}')
        Mi.add(f'v_permlane32_swap_b32 v{vAd}, v{vMx}')
        Mi.add(f'v_max_f32 v{vMx}, v{vMx}, v{vAd}')
        Mi.add(f'v_mov_b32 v{L(b)}, 0')
        for r_ in range(64):
            Mi.add(f'v_accvgpr_write_b32 a{O(b)+r_}, 0')
        Mi.add(f's_mov_b32 s{sUu}, 0')
        L2 = Block()
        L2.add(f'K2_FB{nm}2:')
        L2.add(addr()); L2.add(loadK())
        for dt in range(4):
            for rg in range(2):
                L2.add(f'buffer_load_dwordx4 {vr(VF+4*(rg*4+dt),4)}, v{vAd+1+dt}, s[{sKV}:{sKV+3}], 0 offen offset:{1024*rg}')
        for rr in range(16):
            L2.add(f'v_fma_f32 v{CF+rr}, v{TB_+rr}, s{sFl}, -v{vMx}')
        L2.add(scores())
        for rg in range(2):
            for jj in range(4):
                L2.add(pair(SS + 8 * rg + 2 * jj, PP + 4 * rg + jj, L(b)))
        for rg in range(2):
            for dt in range(4):
                d = ar(O(b) + 16 * dt, 16)
                L2.add(f'v_mfma_f32_32x32x16_bf16 {d}, {vr(VF+4*(rg*4+dt),4)}, {vr(PP+4*rg,4)}, {d}')
        L2.add(f's_add_u32 s{sUu}, s{sUu}, 1')
        L2.add(f's_cmp_le_u32 s{sUu}, s{sN}')
        L2.add(f's_cbranch_scc1 K2_FB{nm}2')
        Z = epilogue(b)
        Z.add(f's_branch K2_BACK{nm}')
        return [A, L1, Mi, L2, Z]

    CHK = Block()
    FB = []
    if fallback_on:
        for b in range(2):
            CHK.add(f'v_cmp_nge_f32 vcc, {LIM}, v{L(b)}')
            CHK.add('s_nop 4')
            CHK.add(f's_cbranch_vccnz K2_FB{"AB"[b]}')
            CHK.add(f'K2_BACK{"AB"[b]}:')
            FB.append(fallback(b))

    C0 = Block()
    C0.add(f's_lshl_b32 s{sCnt}, s{sJ}, 1')
    C0.add(f's_cmp_eq_u32 s{sJ}, 0')
    C0.add('s_cbranch_scc1 K2_DM_J0')
    C0.add(f's_sub_u32 s{sCnt}, s{sCnt}, 1')
    C0.add('K2_D:')
    C1 = Block()
    C1.add(f's_sub_u32 s{sCnt}, s{sCnt}, 1')
    C1.add(f's_cmp_lg_u32 s{sCnt}, 0')
    C1.add('s_cbranch_scc1 K2_D')
    C1.add(f's_mov_b32 s{sU}, 0')
    C1.add('K2_DM_J0:')
    C1.add('K2_DM:')
    C2 = Block()
    C2.add(f's_cmp_lt_i32 s{sU}, 4')
    C2.add('s_cbranch_scc1 K2_DM')
    C2.add(f's_cmp_eq_u32 s{sJ}, 7')
    C2.add(f's_cselect_b32 s{sU}, 0, -4')
    C3 = Block()
    C3.add(f's_cmp_eq_u32 s{sJ}, 7')
    C3.add('s_cbranch_scc1 K2_SM')
    C3.add(f's_lshl_b32 s{sCnt}, s{sJ}, 2')
    C3.add(f's_sub_u32 s{sCnt}, 27, s{sCnt}')
    C3.add('K2_S:')
    C4 = Block()
    C4.add(f's_sub_u32 s{sCnt}, s{sCnt}, 1')
    C4.add(f's_cmp_lg_u32 s{sCnt}, 0')
    C4.add('s_cbranch_scc1 K2_S')
    C4.add(f's_mov_b32 s{sU}, 0')
    C4.add('K2_SM:')
    C5 = Block()
    C5.add(f's_cmp_lt_i32 s{sU}, 4')
    C5.add('s_cbranch_scc1 K2_SM')
    END = Block()
    if st_:
        END.add(stamp(5))
    if ts:
        END.add('v_mov_b32 v0, v255')
        ts_end(END, 1)
    if st_:
        stamps_out(END, 6)
    END.add('K2_END:')
    END.add('s_endpgm')
    if st_:
        C2.add(stamp(3))
        C3.insert(0, stamp(4))

    blocks = [P, QP, A1, F0, C0, D, C1, DM, C2, T, EA, C3, SG, C4, SM, C5, FN, EB, CHK, END] + [x for f in FB for x in f]
    pre = [P, QP, A1, F0, C0]
    paths = [
        pre + [D, C1, DM, C2, DM, C2, T, EA, C3, SG, C4, SM, C5, SM, C5, FN, EB, CHK, END],
        pre + [D, C1, D, C1, D, C1, D, C1, DM, C2, DM, C2, T, EA, C3, SG, C4, SG, C4, SG, C4, SG, C4, SM, C5, SM, C5, FN, EB, CHK, END],
        pre + [DM, C2, T, EA, C3, SG, C4, SG, C4, SG, C4, SM, C5, SM, C5, FN, EB, CHK, END],
        pre + [D, C1, D, C1, D, C1, DM, C2, DM, C2, T, EA, C3, SM, C5, FN, EB, CHK, END],
    ]
    for a, l1, mi, l2, z in FB:
        paths.append([EB, CHK, a, l1, l1, mi, l2, l2, z, CHK, END])
    resolve_waits(paths)
    resolve_hazards(paths, name='K2')
    for nm, b in (('P', P), ('QP', QP), ('A1', A1), ('F0', F0), ('D', D), ('DM', DM), ('T', T), ('EA', EA), ('SG', SG), ('SM', SM), ('FN', FN)):
        print('K2', nm, estimate(b))
    return kernel_text(NAME, blocks, vgpr=512, acc=256)


if __name__ == '__main__':
    open('k2.s', 'w').write(gen(ts=True, st_=True))
```

```python
from common import *

LDS_RED = 65536
LDS_BYTES = 65536 + 4 * 20480
NWG = 240
NWG3 = 256


def colsum_blocks(sSp, sW, vl, ts):
    sWs, sO = 16, 20
    sOff, sCnt, sM = 40, 41, 42
    vO, vAcc, vTm, RING = 0, 4, 16, 64
    A = Block()
    A.add('K3_CS:')
    A.add(f's_cmp_ge_u32 s{sSp}, 18')
    A.add('s_cbranch_scc1 K3_END')
    A.add('s_waitcnt lgkmcnt(0)')
    A.add(f's_load_dwordx4 s[12:15], s[0:1], {KA_WG}')
    A.add(f's_cmp_ge_u32 s{sSp}, 9')
    A.add(f's_cselect_b32 s{sM}, 1, 0')
    A.add(f's_mul_i32 s{sOff}, s{sM}, 9')
    A.add(f's_sub_u32 s{sSp}, s{sSp}, s{sOff}')
    A.add(f's_mul_i32 s{sOff}, s{sW}, {144 * 9216}')
    A.add(f's_lshl_b32 s{sCnt}, s{sSp}, 10')
    A.add(f's_add_u32 s{sOff}, s{sOff}, s{sCnt}')
    A.add(f'v_lshlrev_b32 v{vO}, 4, v{vl}')
    A.add(f'v_add_u32 v{vO}, s{sOff}, v{vO}')
    A.add(f's_mul_i32 s{sOff}, s{sW}, 36864')
    A.add(f's_mul_i32 s{sCnt}, s{sM}, {4608 * 4}')
    A.add(f's_add_u32 s{sOff}, s{sOff}, s{sCnt}')
    A.add(f's_lshl_b32 s{sCnt}, s{sSp}, 11')
    A.add(f's_add_u32 s{sOff}, s{sOff}, s{sCnt}')
    A.add(f'v_lshlrev_b32 v{vO+1}, 5, v{vl}')
    A.add(f'v_add_u32 v{vO+1}, s{sOff}, v{vO+1}')
    A.add(f's_cmp_eq_u32 s{sM}, 0')
    A.add(f's_cselect_b32 s{sWs}, s12, s14')
    A.add(f's_cselect_b32 s{sWs+1}, s13, s15')
    A.add(f's_mov_b32 s{sWs+2}, {576 * 9216}')
    A.add(f's_mov_b32 s{sWs+3}, 0x00020000')
    srd(A, sO, 6, 4 * 36864, off=WS_CS)
    A.add(f's_mov_b32 s{sOff}, 0')

    def ld(i):
        return [I(f'buffer_load_dwordx4 {vr(RING + 4*i, 4)}, v{vO}, s[{sWs}:{sWs+3}], s{sOff} offen'),
                I(f's_add_u32 s{sOff}, s{sOff}, 9216')]

    def use(i):
        t = vTm + 8 * (i % 2)
        out = []
        for d in range(4):
            out.append(I(f'v_lshlrev_b32 v{t+2*d}, 16, v{RING+4*i+d}'))
            out.append(I(f'v_and_b32 v{t+2*d+1}, 0xffff0000, v{RING+4*i+d}'))
        for d in range(4):
            out.append(I(f'v_pk_add_f32 {vr(vAcc+2*d,2)}, {vr(vAcc+2*d,2)}, {vr(t+2*d,2)}'))
        return out
    for i in range(16):
        A.add(ld(i))
    for k in range(8):
        A.add(f'v_mov_b32 v{vAcc+k}, 0')
    A.add(f's_mov_b32 s{sCnt}, 8')
    L = Block()
    L.add('K3_CSL:')
    for i in range(16):
        L.add(use(i)); L.add(ld(i))
    C = Block()
    C.add(f's_sub_u32 s{sCnt}, s{sCnt}, 1')
    C.add(f's_cmp_lg_u32 s{sCnt}, 0')
    C.add('s_cbranch_scc1 K3_CSL')
    Z = Block()
    for i in range(16):
        Z.add(use(i))
    for hh in range(2):
        Z.add(f'buffer_store_dwordx4 {vr(vAcc+4*hh,4)}, v{vO+1}, s[{sO}:{sO+3}], 0 offen offset:{16*hh}')
    if ts:
        Z.add('v_mov_b32 v0, v255')
        ts_end(Z, 2)
    Z.add('s_endpgm')
    return [A, L, C, Z]


def gen(mode, store_mod='', ts=False, st_=False, LA=3):
    K3 = (mode == 'o')
    NAME = 'oproj_kernel' if K3 else 'down_kernel'
    PF = 'K3' if K3 else 'K5'
    NK = 128 if K3 else 144
    NQ = NK // 4
    NB = NQ // 4
    sA, sWs, sR, sO, sS = 16, 20, 24, 28, 32
    sW, sM, sN, sTT = 36, 37, 38, 39
    sWM, sAO, sWO, sCnt = 40, 41, 42, 43
    sT = 48
    ACC = 0
    WF = 80
    RES = 112
    vA, vWd, vRd = 128, 133, 137
    vRow, vFrag, vSt = 140, 142, 144
    vRed, vWr = 146, 148
    vl = 150
    vT = 152
    def acc(tt, i): return ACC + (tt * 4 + i) * 4
    def afr(slot, tt): return slot * 20 + tt * 4

    P = Block()
    P.add(f's_cmp_ge_u32 s2, {NWG3 if K3 else NWG}')
    P.add(f's_cbranch_scc1 {PF}_END')
    if ts:
        ts_begin(P)
        P.add('v_mov_b32 v255, v0')
    if st_:
        P.add(stamp(0))
    if K3:
        P.add(f's_load_dwordx2 s[4:5], s[0:1], {KA_WO}')
        P.add(f's_load_dwordx2 s[8:9], s[0:1], {KA_X}')
    else:
        P.add(f's_load_dwordx2 s[4:5], s[0:1], {KA_WD}')
        P.add(f's_load_dwordx2 s[8:9], s[0:1], {KA_OUT}')
    P.add(f's_load_dwordx2 s[6:7], s[0:1], {KA_WS}')
    l, t0, t1, t2, t3 = vl, vT, vT + 1, vT + 2, vT + 3
    P.add(f'v_and_b32 v{l}, 63, v0')
    P.add(f'v_lshrrev_b32 v{t0}, 6, v0')
    P.add(f'v_readfirstlane_b32 s{sW}, v{t0}')
    P.add(f's_and_b32 s{sT}, s2, 7')
    P.add(f's_mul_i32 s{sT}, s{sT}, 30')
    P.add(f's_lshr_b32 s{sT+1}, s2, 3')
    P.add(f's_add_u32 s{sT}, s{sT}, s{sT+1}')
    if K3:
        P.add(f's_sub_u32 s{sT+2}, s2, {240 - 6}')
        P.add(f's_cmp_ge_u32 s{sT+1}, 30')
        P.add(f's_cbranch_scc1 K3_CS')
        P.add(f's_sub_u32 s{sT+2}, s{sT}, 234')
        P.add(f's_cmp_ge_u32 s{sT}, 234')
        P.add(f's_cbranch_scc1 K3_CS')
    else:
        P.add(f's_cmp_ge_u32 s{sT}, 234')
        P.add(f's_cbranch_scc1 {PF}_END')
    P.add(f's_mul_i32 s{sM}, s{sT}, 7282')
    P.add(f's_lshr_b32 s{sM}, s{sM}, 16')
    P.add(f's_mul_i32 s{sT+1}, s{sM}, 9')
    P.add(f's_sub_u32 s{sN}, s{sT}, s{sT+1}')
    P.add(f's_mul_i32 s{sTT}, s{sM}, 5')
    P.add(f's_min_u32 s{sTT}, s{sTT}, 123')
    P.add(f's_lshl_b32 s{sWM}, s{sW}, 14')
    P.add(f's_mul_i32 s{sT}, s{sW}, {NQ * 36864}')
    P.add(f's_lshl_b32 s{sT+1}, s{sN}, 7')
    P.add(f's_add_u32 s{sT}, s{sT}, s{sT+1}')
    P.add(f'v_lshrrev_b32 v{t0}, 3, v{l}')
    P.add(f'v_mul_u32_u24 v{t1}, 1152, v{t0}')
    P.add(f'v_add_u32 v{t1}, s{sT}, v{t1}')
    P.add(f'v_bfe_u32 v{t0}, v{l}, 4, 1')
    P.add(f'v_and_b32 v{t2}, 7, v{l}')
    P.add(f'v_xor_b32 v{t2}, v{t2}, v{t0}')
    P.add(f'v_lshl_add_u32 v{vWd}, v{t2}, 4, v{t1}')
    for i in range(1, 4):
        P.add(f'v_add_u32 v{vWd+i}, {(9216 - 1024) * i}, v{vWd}')
    P.add(f's_mul_i32 s{sT}, s{sTT}, {NK * 1024}')
    P.add(f's_mul_i32 s{sT+1}, s{sW}, {NQ * 1024}')
    P.add(f's_add_u32 s{sT}, s{sT}, s{sT+1}')
    P.add(f'v_lshlrev_b32 v{t0}, 4, v{l}')
    P.add(f'v_add_u32 v{vA}, s{sT}, v{t0}')
    for tt in range(1, 5):
        P.add(f'v_add_u32 v{vA+tt}, {tt * NK * 1024}, v{vA}')
    P.add(f's_mov_b32 s{sAO}, 0')
    P.add(f's_mov_b32 s{sWO}, 0')
    srd(P, sWs, 4, NK * 32 * 1152)
    srd(P, sA, 6, 128 * NK * 1024, off=(WS_CTX if K3 else WS_FF))

    def loads(k, imm):
        slot = k % 4
        out = [I(f's_add_u32 m0, s{sWM}, {slot * 4096}')]
        for i in range(4):
            out.append(I(f'buffer_load_dwordx4 v{vWd+i}, s[{sWs}:{sWs+3}], s{sWO} offen offset:{1024*i} lds',
                         grp='W', newgrp=(i == 0)))
        out.append(I(f's_add_u32 s{sWO}, s{sWO}, 36864'))
        for tt in range(5):
            out.append(I(f'buffer_load_dwordx4 {ar(afr(slot, tt), 4)}, v{vA+tt}, s[{sA}:{sA+3}], s{sAO} offen offset:{imm}'))
        return out

    for k in range(LA):
        P.add(loads(k, k * 1024))
    P.add(f'v_lshrrev_b32 v{t0}, 5, v{l}')
    P.add(f'v_lshlrev_b32 v{t0}, 4, v{t0}')
    P.add(f'v_bfe_u32 v{t1}, v{l}, 4, 1')
    P.add(f'v_lshl_add_u32 v{t0}, v{t1}, 2, v{t0}')
    P.add(f'v_bfe_u32 v{t1}, v{l}, 2, 2')
    P.add(f'v_add_u32 v{t0}, v{t0}, v{t1}')
    P.add(f'v_lshlrev_b32 v{t0}, 7, v{t0}')
    P.add(f'v_add_u32 v{t0}, s{sWM}, v{t0}')
    P.add(f'v_lshrrev_b32 v{t1}, 1, v{t1}')
    P.add(f'v_and_b32 v{t2}, 3, v{l}')
    P.add(f'v_lshlrev_b32 v{t2}, 1, v{t2}')
    P.add(f'v_xor_b32 v{t3}, v{t2}, v{t1}')
    P.add(f'v_lshl_add_u32 v{vRd}, v{t3}, 4, v{t0}')
    P.add(f'v_xor_b32 v{t3}, 1, v{t3}')
    P.add(f'v_lshl_add_u32 v{vRd+1}, v{t3}, 4, v{t0}')
    srd(P, sR, 8 if K3 else 6, 2359296, off=(0 if K3 else WS_H))
    srd(P, sO, 6 if K3 else 8, 2359296, off=(WS_H if K3 else 0))
    if K3:
        srd(P, sS, 6, 9 * 16384, off=WS_ST)
    else:
        srd(P, sS, 6, 8192, off=WS_R2)
    for u in range(2):
        if u == 0:
            P.add(f's_add_u32 s{sT}, s{sTT}, s{sW}')
        else:
            P.add(f's_add_u32 s{sT}, s{sTT}, 4')
        P.add(f's_lshl_b32 s{sT}, s{sT}, 4')
        P.add(f'v_and_b32 v{t0}, 15, v{l}')
        P.add(f'v_add_u32 v{t0}, s{sT}, v{t0}')
        P.add(f'v_lshrrev_b32 v{t1}, 4, v{l}')
        P.add(f'v_mul_u32_u24 v{t2}, 1152, v{t0}')
        P.add(f'v_lshl_add_u32 v{t2}, v{t1}, 5, v{t2}')
        P.add(f's_lshl_b32 s{sT+1}, s{sN}, 7')
        P.add(f'v_add_u32 v{vRow+u}, s{sT+1}, v{t2}')
        P.add(f'v_lshrrev_b32 v{t2}, 5, v{t0}')
        P.add(f'v_mul_u32_u24 v{t2}, 36864, v{t2}')
        P.add(f'v_lshl_add_u32 v{t2}, v{t1}, 10, v{t2}')
        P.add(f'v_and_b32 v{t3}, 31, v{t0}')
        P.add(f'v_lshl_add_u32 v{t2}, v{t3}, 4, v{t2}')
        P.add(f's_lshl_b32 s{sT+1}, s{sN}, 12')
        P.add(f'v_add_u32 v{vFrag+u}, s{sT+1}, v{t2}')
        if K3:
            P.add(f'v_lshlrev_b32 v{t2}, 3, v{t0}')
            P.add(f's_lshl_b32 s{sT+1}, s{sN}, 14')
            P.add(f'v_add_u32 v{vSt+u}, s{sT+1}, v{t2}')
        if not K3:
            P.add(f'v_lshlrev_b32 v{t2}, 2, v{t0}')
            P.add(f'buffer_load_dword v{vSt+u}, v{t2}, s[{sS}:{sS+3}], 0 offen')
        for hh in range(2):
            if K3:
                P.add(f'buffer_load_dwordx4 {vr(RES+8*u+4*hh,4)}, v{vRow+u}, s[{sR}:{sR+3}], 0 offen offset:{16*hh}')
            else:
                P.add(f'buffer_load_dwordx4 {vr(RES+8*u+4*hh,4)}, v{vFrag+u}, s[{sR}:{sR+3}], 0 offen offset:{512*hh}')
    P.add(f'v_lshlrev_b32 v{t0}, 4, v{l}')
    P.add(f's_mul_i32 s{sT}, s{sW}, 20480')
    P.add(f's_add_u32 s{sT}, s{sT}, {LDS_RED}')
    P.add(f'v_add_u32 v{vWr}, s{sT}, v{t0}')
    P.add(f's_lshl_b32 s{sT}, s{sW}, 12')
    P.add(f's_add_u32 s{sT}, s{sT}, {LDS_RED}')
    P.add(f'v_add_u32 v{vRed}, s{sT}, v{t0}')
    P.add(f'v_add_u32 v{vRed+1}, {LDS_RED + 16384}, v{t0}')
    P.add(f's_mov_b32 s{sCnt}, {NB - 1}')

    def rdW(k):
        slot = k % 4
        out = []
        for i in range(4):
            d = WF + (k % 2) * 16 + i * 4
            off = slot * 4096 + 8 * (i & 1)
            out.append(I(f'ds_read_b64_tr_b16 {vr(d,2)}, v{vRd + (i >> 1)} offset:{off}'))
            out.append(I(f'ds_read_b64_tr_b16 {vr(d+2,2)}, v{vRd + (i >> 1)} offset:{off + 1024}'))
        return out

    P.need(('W', 'abs', 0))
    P.add(rdW(0))
    if st_:
        P.add(stamp(1))

    def body(first, last):
        S = Sched()
        for s in range(4):
            g0 = s * 20
            for i in range(4):
                for tt in range(5):
                    d = vr(acc(tt, i), 4)
                    S.mf(f'v_mfma_f32_16x16x32_bf16 {d}, {vr(WF + (s % 2) * 16 + i * 4, 4)}, {ar(afr(s, tt), 4)}, {"0" if (first and s == 0) else d}')
            if (not last) or (s + LA < 4):
                ld = loads(s + LA, ((s + LA) % 4) * 1024)
                if s + LA == 4:
                    S.at(g0, I(f's_add_u32 s{sAO}, s{sAO}, 4096'), prio=0)
                for q, x in enumerate(ld):
                    S.at(g0 + q, x, prio=1)
            if (not last) or s < 3:
                S.at(g0 + 11, I('', need=[('W', LA - 1)] if ((not last) or (s + LA < 4)) else [('W', max(0, 3 - s - 1))]), prio=0)
                for q, x in enumerate(rdW(s + 1)):
                    S.at(g0 + 11 + q, x, prio=1)
        return S.block()

    B0 = body(True, False)
    PF_L = Block(); PF_L.add(f'{PF}_L:')
    B1 = body(False, False)
    C1 = Block()
    C1.add(f's_sub_u32 s{sCnt}, s{sCnt}, 1')
    C1.add(f's_cmp_lg_u32 s{sCnt}, 1')
    C1.add(f's_cbranch_scc1 {PF}_L')
    B2 = body(False, True)

    E = Block()
    if st_:
        E.add(stamp(2))
    for tt in range(5):
        for i in range(4):
            E.add(f'ds_write_b128 v{vWr}, {vr(acc(tt, i), 4)} offset:{(tt*4+i)*1024}')
    E.need(('lgkm', 0))
    E.add('s_barrier')

    def unit(u):
        U = Block()
        R = 0
        for i in range(4):
            for w in range(4):
                U.add(f'ds_read_b128 {vr(R + (i*4+w)*4, 4)}, v{vRed+u} offset:{w*20480 + i*1024}')
        X = 64
        for j in range(8):
            U.add(f'v_lshlrev_b32 v{X+2*j}, 16, v{RES+8*u+j}')
            U.add(f'v_and_b32 v{X+2*j+1}, 0xffff0000, v{RES+8*u+j}')
        for i in range(4):
            b = R + i * 16
            for h2 in range(2):
                U.add(f'v_pk_add_f32 {vr(b+2*h2,2)}, {vr(b+2*h2,2)}, {vr(b+4+2*h2,2)}')
                U.add(f'v_pk_add_f32 {vr(b+8+2*h2,2)}, {vr(b+8+2*h2,2)}, {vr(b+12+2*h2,2)}')
            for h2 in range(2):
                U.add(f'v_pk_add_f32 {vr(b+2*h2,2)}, {vr(b+2*h2,2)}, {vr(b+8+2*h2,2)}')
            for h2 in range(2):
                if K3:
                    U.add(f'v_pk_add_f32 {vr(X+4*i+2*h2,2)}, {vr(X+4*i+2*h2,2)}, {vr(b+2*h2,2)}')
                else:
                    U.add(f'v_fmac_f32 v{X+4*i+2*h2}, v{b+2*h2}, v{vSt+u}')
                    U.add(f'v_fmac_f32 v{X+4*i+2*h2+1}, v{b+2*h2+1}, v{vSt+u}')
        Y = 96
        for j in range(8):
            U.add(f'v_cvt_pk_bf16_f32 v{Y+j}, v{X+2*j}, v{X+2*j+1}')
        for hh in range(2):
            if K3:
                U.add(f'buffer_store_dwordx4 {vr(Y+4*hh,4)}, v{vFrag+u}, s[{sO}:{sO+3}], 0 offen offset:{512*hh} {store_mod}')
            else:
                U.add(f'buffer_store_dwordx4 {vr(Y+4*hh,4)}, v{vRow+u}, s[{sO}:{sO+3}], 0 offen offset:{16*hh} {store_mod}')
        if K3:
            s1, s2 = 104, 105
            U.add(f'v_add_f32 v{s1}, v{X}, v{X+1}')
            U.add(f'v_mul_f32 v{s2}, v{X}, v{X}')
            U.add(f'v_fmac_f32 v{s2}, v{X+1}, v{X+1}')
            for j in range(2, 16):
                U.add(f'v_add_f32 v{s1}, v{s1}, v{X+j}')
                U.add(f'v_fmac_f32 v{s2}, v{X+j}, v{X+j}')
            for sw in ('v_permlane16_swap_b32', 'v_permlane32_swap_b32'):
                U.add(f'v_mov_b32 v{t0}, v{s1}')
                U.add(f'v_mov_b32 v{t1}, v{s2}')
                U.add(f'{sw} v{t0}, v{s1}')
                U.add(f'{sw} v{t1}, v{s2}')
                U.add(f'v_add_f32 v{s1}, v{s1}, v{t0}')
                U.add(f'v_add_f32 v{s2}, v{s2}, v{t1}')
            U.add(f'buffer_store_dwordx2 {vr(s1,2)}, v{vSt+u}, s[{sS}:{sS+3}], 0 offen {store_mod}')
        return U

    U0 = unit(0)
    C2 = Block()
    C2.add(f's_cmp_lg_u32 s{sW}, 0')
    C2.add(f's_cbranch_scc1 {PF}_DONE')
    U1 = unit(1)
    END = Block()
    END.add(f'{PF}_DONE:')
    if st_:
        END.add(stamp(3))
    if ts:
        END.add('v_mov_b32 v0, v255')
        ts_end(END, 2 if K3 else 4)
    if st_:
        stamps_out(END, 4, ptr_off=WS_TS + ((9 if K3 else 11) << 20))
    END.add(f'{PF}_END:')
    END.add('s_endpgm')

    blocks = [P, B0, PF_L, B1, C1, B2, E, U0, C2, U1, END]
    paths = [[P, B0, PF_L, B1, C1, B1, C1, B1, C1, B2, E, U0, C2, U1, END],
             [P, B0, PF_L, B1, C1, B2, E, U0, C2, END]]
    if K3:
        cs = colsum_blocks(sT + 2, sW, vl, ts)
        blocks += cs
        a, lp, cc, z = cs[0], cs[1], cs[2], cs[3]
        paths.append([a, lp, cc, lp, cc, lp, cc, z])
    resolve_waits(paths)
    resolve_hazards(paths, name=PF)
    for nm, b in (('P', P), ('B0', B0), ('B1', B1), ('B2', B2), ('E', E), ('U0', U0)):
        print(PF, nm, estimate(b))
    return kernel_text(NAME, blocks, vgpr=512, acc=256)


if __name__ == '__main__':
    open('k3.s', 'w').write(gen('o', ts=True, st_=True))
    open('k5.s', 'w').write(gen('d', ts=True, st_=True))
```

```python
from common import *

NAME = 'ffn_kernel'
SLOT = 24576
LDS_TBL = 4 * SLOT
LDS_BYTES = LDS_TBL + 2048
STAGES = [(0, 0), (1, 0), (0, 1), (1, 1), (0, 2), (1, 2), (2, 0), (2, 1), (2, 2), (3, 0), (3, 1), (3, 2), (4, 0), (4, 1), (4, 2)]


def gen(store_mod='', ts=False, st_=False, LOOK=4, NPRE=2, mapping='4x8', PACE=1):
    sWs, sH, sF, sS, sC = 16, 20, 24, 28, 32
    sW, sM, sFB = 36, 37, 38
    sWM, sSO, sXO = 39, 40, 41
    s4096 = 42
    sR2o = 43
    sT = 48
    ACC = 0
    WF = 128
    CS = 160
    vNM, vR2 = 176, 180
    vRd = 184
    vWd, vWd4 = 188, 189
    vHo, vFo = 190, 192
    vTb, vl = 194, 195
    vT = 196
    HV = 224

    def acc(p, a, T): return ACC + (p % 2) * 64 + (a * 2 + T) * 16
    def hfr(s, T):
        i = s * 2 + T
        return ar(4 * i, 4) if i < 64 else vr(HV + 4 * (i - 64), 4)

    P = Block()
    P.add('s_cmp_ge_u32 s2, 256')
    P.add('s_cbranch_scc1 K4_END')
    if ts:
        ts_begin(P)
        P.add('s_mov_b32 s90, 0')
    if st_:
        P.add(stamp(0))
    P.add(f's_load_dwordx4 s[4:7], s[0:1], {KA_WG}')
    P.add(f's_load_dwordx2 s[8:9], s[0:1], {KA_WS}')
    l, t0, t1, t2, t3 = vl, vT, vT + 1, vT + 2, vT + 3
    P.add(f'v_and_b32 v{l}, 63, v0')
    P.add(f'v_lshrrev_b32 v{t0}, 6, v0')
    P.add(f'v_readfirstlane_b32 s{sW}, v{t0}')
    if ts:
        P.add(f'v_mov_b32 v{vTb}, v0')
    P.add(f's_and_b32 s{sT}, s2, 7')
    P.add(f's_lshr_b32 s{sT+1}, s2, 3')
    nfb = int(mapping.split('x')[0])
    lg = nfb.bit_length() - 1
    nfg = 32 // nfb
    P.add(f's_and_b32 s{sT+2}, s{sT}, {nfg - 1}')
    P.add(f's_lshl_b32 s{sFB}, s{sT+2}, {lg}')
    P.add(f's_and_b32 s{sT+2}, s{sT+1}, {nfb - 1}')
    P.add(f's_add_u32 s{sFB}, s{sFB}, s{sT+2}')
    P.add(f's_lshr_b32 s{sM}, s{sT+1}, {lg}')
    if nfg < 8:
        P.add(f's_lshr_b32 s{sT+2}, s{sT}, {nfg.bit_length() - 1}')
        P.add(f's_lshl_b32 s{sT+2}, s{sT+2}, {5 - lg}')
        P.add(f's_add_u32 s{sM}, s{sM}, s{sT+2}')
    P.add(f's_and_b32 s{sT}, s{sW}, 1')
    P.add(f's_lshr_b32 s{sT+1}, s{sW}, 1')
    P.add(f's_mul_i32 s{sWM}, s{sT}, 6144')
    P.add(f's_mul_i32 s{sT+2}, s{sT+1}, 12288')
    P.add(f's_add_u32 s{sWM}, s{sWM}, s{sT+2}')
    P.add(f's_mul_i32 s{sT+2}, s{sT}, {96*9216}')
    P.add(f's_mul_i32 s{sT+3}, s{sFB}, 288')
    P.add(f's_add_u32 s{sT+2}, s{sT+2}, s{sT+3}')
    P.add(f's_lshl_b32 s{sT+3}, s{sT+1}, 1')
    P.add(f'v_lshrrev_b32 v{t0}, 2, v{l}')
    P.add(f'v_mul_u32_u24 v{t0}, 9216, v{t0}')
    P.add(f'v_add_u32 v{t0}, s{sT+2}, v{t0}')
    P.add(f'v_and_b32 v{t1}, 3, v{l}')
    P.add(f'v_xor_b32 v{t1}, s{sT+3}, v{t1}')
    P.add(f'v_lshl_add_u32 v{vWd}, v{t1}, 4, v{t0}')
    P.add(f'v_and_b32 v{t1}, 1, v{t1}')
    P.add(f'v_lshl_add_u32 v{vWd4}, v{t1}, 4, v{t0}')
    P.add(f's_lshl_b32 s{sT+2}, s{sM}, 3')
    P.add(f's_lshl_b32 s{sT+3}, s{sW}, 1')
    P.add(f's_add_u32 s{sT+2}, s{sT+2}, s{sT+3}')
    P.add(f's_mul_i32 s{sT+3}, s{sT+2}, 36864')
    P.add(f'v_lshlrev_b32 v{t0}, 4, v{l}')
    P.add(f'v_add_u32 v{vHo}, s{sT+3}, v{t0}')
    P.add(f'v_add_u32 v{vHo+1}, 36864, v{vHo}')
    P.add(f's_movk_i32 s{s4096}, 4096')
    P.add(f's_cmp_eq_u32 s{sFB}, 0')
    P.add(f's_cselect_b32 s{sR2o}, {WS_R2 - WS_ST}, 0x40000000')
    P.add(f's_cmp_eq_u32 s{sT+1}, 0')
    P.add(f's_cselect_b32 s{sWs}, s4, s6')
    P.add(f's_cselect_b32 s{sWs+1}, s5, s7')
    P.add(f's_mov_b32 s{sWs+2}, {576*9216}')
    P.add(f's_mov_b32 s{sWs+3}, 0x00020000')
    srd(P, sH, 8, 64 * 36864, off=WS_H)

    def dmaW(st):
        p, c = STAGES[st]
        slot = st % 4
        vo = vWd4 if p == 4 else vWd
        out = []
        for i in range(6):
            if i == 0:
                out.append(I(f's_add_u32 m0, s{sWM}, {slot*SLOT}'))
            if i == 4:
                out.append(I(f's_add_u32 m0, s{sWM}, {slot*SLOT + 4096}'))
            so = (c * 192 + 16 * i) * 9216 + p * 64 - 1024 * (i & 3)
            out.append(I(f's_mov_b32 s{sSO}, {so}'))
            out.append(I(f'buffer_load_dwordx4 v{vo}, s[{sWs}:{sWs+3}], s{sSO} offen offset:{1024*(i&3)} lds',
                         grp='W', newgrp=(i == 0)))
        return out

    def ldH(s):
        out = []
        if s % 4 == 0:
            out.append(I(f's_mov_b32 s{sXO}, {s * 1024}'))
        for T in range(2):
            out.append(I(f'buffer_load_dwordx4 {hfr(s, T)}, v{vHo+T}, s[{sH}:{sH+3}], s{sXO} offen offset:{(s%4)*1024}'))
        return out

    P.add(dmaW(0))
    for s in range(NPRE):
        P.add(ldH(s))
    P.add(f'v_bfe_u32 v{t0}, v{l}, 4, 1')
    P.add(f'v_lshrrev_b32 v{t1}, 5, v{l}')
    P.add(f'v_bfe_u32 v{t2}, v{l}, 2, 2')
    P.add(f'v_lshl_add_u32 v{t1}, v{t1}, 3, v{t2}')
    P.add(f'v_lshlrev_b32 v{t1}, 6, v{t1}')
    P.add(f'v_mul_u32_u24 v{t2}, 12288, v{t0}')
    P.add(f'v_add_u32 v{t1}, v{t1}, v{t2}')
    P.add(f'v_and_b32 v{t2}, 3, v{l}')
    P.add(f'v_lshl_add_u32 v{t1}, v{t2}, 3, v{t1}')
    P.add(f'v_lshl_add_u32 v{vRd}, v{t0}, 5, v{t1}')
    P.add(f'v_xor_b32 v{vRd+2}, 32, v{vRd}')
    P.add(f'v_add_u32 v{vRd+1}, {2*SLOT}, v{vRd}')
    P.add(f'v_add_u32 v{vRd+3}, {2*SLOT}, v{vRd+2}')
    srd(P, sF, 8, 128 * 147456, off=WS_FF)
    srd(P, sS, 8, WS_R2 - WS_ST + 8192, off=WS_ST)
    srd(P, sC, 8, 4 * 9216 * 4, off=WS_CS)
    P.add(f's_lshl_b32 s{sT+4}, s{sM}, 3')
    P.add(f's_lshl_b32 s{sT+5}, s{sW}, 1')
    P.add(f's_add_u32 s{sT+4}, s{sT+4}, s{sT+5}')
    P.add(f's_mul_i32 s{sT+5}, s{sT+4}, {2*147456}')
    P.add(f's_mul_i32 s{sT+6}, s{sFB}, {9*512}')
    P.add(f's_add_u32 s{sT+5}, s{sT+5}, s{sT+6}')
    P.add(f'v_bfe_u32 v{t0}, v{l}, 4, 1')
    P.add(f'v_mul_u32_u24 v{t0}, 147456, v{t0}')
    P.add(f'v_add_u32 v{t0}, s{sT+5}, v{t0}')
    P.add(f'v_lshrrev_b32 v{t1}, 5, v{l}')
    P.add(f'v_lshl_add_u32 v{t0}, v{t1}, 8, v{t0}')
    P.add(f'v_and_b32 v{t1}, 15, v{l}')
    P.add(f'v_lshl_add_u32 v{vFo}, v{t1}, 4, v{t0}')
    P.add(f'v_add_u32 v{vFo+1}, {2*147456}, v{vFo}')

    def stats_loads():
        out = []
        out.append(I(f's_lshl_b32 s{sT+4}, s{sT+4}, 8'))
        out.append(I(f'v_and_b32 v{t0}, 31, v{l}'))
        out.append(I(f'v_lshlrev_b32 v{t0}, 3, v{t0}'))
        out.append(I(f'v_add_u32 v{t0}, s{sT+4}, v{t0}'))
        return out
    SP = 64

    def rdW(F):
        st, f = FR[F]
        p, c = STAGES[st]
        ks, a = (f // 2, f % 2) if p < 4 else (f, 0)
        slot = st % 4
        dst = WF + (F % 8) * 4
        adr = vRd + 2 * a + (slot >> 1)
        off = (slot & 1) * SLOT + ks * 1024
        return [I(f'ds_read_b64_tr_b16 {vr(dst,2)}, v{adr} offset:{off}'),
                I(f'ds_read_b64_tr_b16 {vr(dst+2,2)}, v{adr} offset:{off+256}')]

    FR = []
    F0 = []
    for st, (p, c) in enumerate(STAGES):
        F0.append(len(FR))
        for f in range(24 if p < 4 else 12):
            FR.append((st, f))
    NF = len(FR)

    P.need(('W', 'abs', 0))
    P.add('s_barrier')
    for F in range(LOOK):
        P.add(rdW(F))
    if st_:
        P.add(stamp(1))

    S = Sched()
    G0 = []
    for st, (p, c) in enumerate(STAGES):
        g0 = S.n()
        G0.append(g0)
        nf = 24 if p < 4 else 12
        for f in range(nf):
            F = F0[st] + f
            ks, a = (f // 2, f % 2) if p < 4 else (f, 0)
            wf = vr(WF + (F % 8) * 4, 4)
            for T in range(2):
                d = vr(acc(p, a, T), 16)
                first = (c == 0 and ks == 0)
                S.mf(f'v_mfma_f32_32x32x16_bf16 {d}, {wf}, {hfr(c*12+ks, T)}, {"0" if first else d}')
            if F + LOOK < NF:
                x, y = rdW(F + LOOK)
                S.at(g0 + 2 * f, x)
                S.at(g0 + 2 * f + 1, y)
        gb = g0 + 2 * (nf - LOOK) - 6
        if st + 1 < len(STAGES):
            S.at(gb, I('', need=[('W', 'abs', st + 1)]), prio=5)
            S.at(gb, I('s_barrier'), prio=5)
    G0.append(S.n())
    early = []
    for s in range(NPRE, 12):
        early += ldH(s)
    early += dmaW(1) + dmaW(2)
    for s in range(12, 24):
        early += ldH(s)
    g = 0
    late = None
    for x in early:
        S.at(g, x, prio=1)
        if x.kind == 'vmem':
            g += PACE
    print('K4 early stream ends in gap', g)
    rest = dmaW(3)
    for s in range(24, 36):
        rest += ldH(s)
    for x in rest:
        S.at(g, x, prio=1)
        if x.kind == 'vmem':
            g += PACE
    print('K4 h stream ends in gap', g, 'stage starts', G0[:6])
    for st, (p, c) in enumerate(STAGES):
        if st >= 1 and st + 3 < len(STAGES):
            nf = 24 if p < 4 else 12
            gb = G0[st] + 2 * (nf - LOOK) - 6
            g2 = max(gb + 1, g + 1) if st == 1 else gb + 1
            for x in dmaW(st + 3):
                S.at(g2, x, prio=1)
                if x.kind == 'vmem':
                    g2 += 2

    q = []
    q.append(f's_lshl_b32 s{sT+4}, s{sT+4}, 8')
    q.append(f'v_and_b32 v{t0}, 31, v{l}')
    q.append(f'v_lshlrev_b32 v{t0}, 3, v{t0}')
    q.append(f'v_add_u32 v{t0}, s{sT+4}, v{t0}')
    tid = vT + 1
    q.append(f'v_lshl_add_u32 v{tid}, s{sW}, 6, v{l}') if False else None
    q = [x for x in q if x]
    q.append(f's_lshl_b32 s{sT+5}, s{sW}, 6')
    q.append(f'v_add_u32 v{tid}, s{sT+5}, v{l}')
    S.pack([I(x) for x in q], G0[2] + 1, G0[2] + 8, cap=4)
    q = []
    a0, a1 = vT + 2, vT + 3
    w0, w1 = vT + 4, vT + 5
    for k, (aa, ww) in enumerate(((a0, w0), (a1, w1))):
        if k == 0:
            q.append(f'v_mov_b32 v{ww}, v{tid}')
        else:
            q.append(f'v_add_u32 v{ww}, 256, v{tid}')
            q.append(f'v_min_u32 v{ww}, 287, v{ww}')
        q.append(f'v_lshrrev_b32 v{aa}, 5, v{ww}')
        q.append(f'v_lshlrev_b32 v{aa}, 4, v{aa}')
        q.append(f'v_and_b32 v{vT+6}, 15, v{ww}')
        q.append(f'v_add_u32 v{aa}, v{aa}, v{vT+6}')
        q.append(f'v_bfe_u32 v{vT+6}, v{ww}, 4, 1')
        q.append(f'v_mul_u32_u24 v{vT+6}, 4608, v{vT+6}')
        q.append(f'v_add_u32 v{aa}, v{aa}, v{vT+6}')
        q.append(f's_mul_i32 s{sT+5}, s{sFB}, 144')
        q.append(f'v_add_u32 v{aa}, s{sT+5}, v{aa}')
        q.append(f'v_lshlrev_b32 v{aa}, 2, v{aa}')
        q.append(f'v_lshlrev_b32 v{ww}, 2, v{ww}')
        q.append(f'v_add_u32 v{ww}, {LDS_TBL}, v{ww}')
    cp = CS
    for k, aa in enumerate((a0, a1)):
        for part in range(4):
            q.append(f's_mov_b32 s{sT+5}, {part * 36864}')
            q.append(f'buffer_load_dword v{cp + 4*k + part}, v{aa}, s[{sC}:{sC+3}], s{sT+5} offen')
    g = S.pack([I(x) for x in q], G0[2] + 8, G0[3], cap=4)
    sp = vT + 8
    def stat_tile(T):
        q = []
        for nb in range(9):
            q.append(f's_mov_b32 s{sT+5}, {nb * 16384}')
            q.append(f'buffer_load_dwordx2 {vr(sp + 2*nb, 2)}, v{t0}, s[{sS}:{sS+3}], s{sT+5} offen offset:{256*T}')
        for nb in range(1, 9):
            q.append(f'v_pk_add_f32 {vr(sp,2)}, {vr(sp,2)}, {vr(sp+2*nb,2)}')
        nm, r2 = vNM + 2 * T, vR2 + 2 * T
        q.append(f'v_mul_f32 v{nm}, {-1.0/576!r}, v{sp}')
        q.append(f'v_mul_f32 v{sp+1}, {1.0/576!r}, v{sp+1}')
        q.append(f'v_fma_f32 v{sp+1}, -v{nm}, v{nm}, v{sp+1}')
        q.append(f'v_max_f32 v{sp+1}, 0, v{sp+1}')
        q.append(f'v_add_f32 v{sp+1}, {1e-5!r}, v{sp+1}')
        q.append(f'v_rcp_f32 v{r2}, v{sp+1}')
        q.append(f'buffer_store_dword v{r2}, v{vR2+1}, s[{sS}:{sS+3}], 0 offen offset:{128*T} {store_mod}')
        return q
    q = []
    for k in range(2):
        q.append(f'v_add_f32 v{cp+4*k}, v{cp+4*k}, v{cp+4*k+1}')
        q.append(f'v_add_f32 v{cp+4*k+2}, v{cp+4*k+2}, v{cp+4*k+3}')
        q.append(f'v_add_f32 v{cp+4*k}, v{cp+4*k}, v{cp+4*k+2}')
        q.append(f'ds_write_b32 v{(w0, w1)[k]}, v{cp+4*k}')
    ra = [f'v_lshrrev_b32 v{vR2+1}, 1, v{t0}',
          f'v_add_u32 v{vR2+1}, s{sR2o}, v{vR2+1}']
    S.pack([I(x) for x in ra], G0[3] - 3, G0[3], cap=6)
    st0 = stat_tile(0)
    S.pack([I(x) for x in st0[:18]], G0[3] + 1, G0[3] + 24, cap=4)
    S.pack([I(x) for x in q], G0[3] + 24, G0[3] + 32, cap=4)
    gb3 = G0[3] + 2 * (24 - LOOK) - 6
    S.at(gb3, I('', need=[('lgkm', 0)]), prio=4)
    S.pack([I(x) for x in st0[18:]], gb3 + 2, G0[4], cap=4)
    st1 = stat_tile(1)
    S.pack([I(x) for x in st1[:18]], G0[4] + 1, G0[4] + 24, cap=4)
    S.pack([I(x) for x in st1[18:]], G0[4] + 30, G0[5] - 2, cap=4)
    S.at(G0[4] + 1, I(f'v_lshrrev_b32 v{vTb}, 5, v{l}'), prio=3)
    S.at(G0[4] + 2, I(f'v_lshlrev_b32 v{vTb}, 4, v{vTb}'), prio=3)
    S.at(G0[4] + 3, I(f'v_add_u32 v{vTb}, {LDS_TBL}, v{vTb}'), prio=3)

    tmp = [0]

    def finish(p, a):
        t = 2 * p + a
        out = []
        for mat in range(2):
            for hf in range(2):
                out.append(f'ds_read_b128 {vr(CS + 8*mat + 4*hf, 4)}, v{vTb} offset:{t*128 + mat*64 + hf*32}')
        for T in range(2):
            b = acc(p, a, T)
            nm = vNM + 2 * T
            y = vT + 8 + 4 * (tmp[0] % 2)
            tmp[0] += 1
            for j in range(4):
                for e in range(2):
                    r = 2 * j + e
                    out.append(f'v_fmac_f32 v{b+r}, v{CS+r}, v{nm}')
                    out.append(f'v_fmac_f32 v{b+8+r}, v{CS+8+r}, v{nm}')
                for e in range(2):
                    out.append(f'v_max_f32 v{b+2*j+e}, 0, v{b+2*j+e}')
                for e in range(2):
                    out.append(f'v_mul_f32 v{b+2*j+e}, v{b+2*j+e}, v{b+8+2*j+e}')
                out.append(f'v_cvt_pk_bf16_f32 v{y+j}, v{b+2*j}, v{b+2*j+1}')
            so, imm = ('0', t * 512) if t < 8 else (f's{s4096}', 0)
            out.append(f'buffer_store_dwordx4 {vr(y,4)}, v{vFo+T}, s[{sF}:{sF+3}], {so} offen offset:{imm} {store_mod}')
        return [I(x) for x in out]

    e = S.pack(finish(0, 0) + finish(0, 1), G0[5] + 3, G0[6] - 1, cap=5)
    print('K4 pass-0 epilogue ends in gap', e - G0[5], 'of', G0[6] - G0[5])
    S.pack(finish(1, 0) + finish(1, 1), G0[6] + 3, G0[9] - 1, cap=3)
    S.pack(finish(2, 0) + finish(2, 1), G0[9] + 3, G0[12] - 1, cap=3)
    e = S.pack(finish(3, 0) + finish(3, 1), G0[12] + 3, G0[15] - 1, cap=4)
    print('K4 pass-3 epilogue ends in gap', e - G0[12], 'of', G0[15] - G0[12])
    if st_:
        for st in range(len(STAGES)):
            S.at(G0[st + 1] - 1, stamp(st + 2), prio=9) if st + 2 < 16 else None
    M = S.block()
    E = Block()
    E.add(finish(4, 0))
    if ts:
        E.add(f's_lshl_b32 s{sT}, s{sW}, 6')
        E.add(f'v_add_u32 v0, s{sT}, v{l}')
        E.add('v_mov_b32 v255, v0')
        ts_end(E, 3)
    if st_:
        E.add('v_mov_b32 v0, v255')
        stamps_out(E, 16, ptr_off=WS_TS + (10 << 20))
    E.add('K4_END:')
    E.add('s_endpgm')
    blocks = [P, M, E]
    resolve_waits([blocks])
    resolve_hazards([blocks], name='K4')
    print('K4 estimate:', estimate(P), estimate(M), estimate(E))
    return kernel_text(NAME, blocks, vgpr=512, acc=256)


if __name__ == "__main__":
    open('k4.s', 'w').write(gen(ts=True, st_=True))
```

```python
import sys, io, contextlib
import gen_k1, gen_k2, gen_k35, gen_k4
REF = 'sequential_preLN__compressed_kv_cla__glu_gated_reglu__prompt.s.ref'
OUT = 'sequential_preLN__compressed_kv_cla__glu_gated_reglu__prompt.s'


def build(parts, out):
    head = []
    for ln in open(REF).read().split('\n'):
        if ln.startswith('; @launch'):
            for label, grid, lds, _ in parts:
                head.append(f'; @launch kernel={label} grid=({grid},1,1) block=(256,1,1) lds={lds}')
            continue
        if ln.startswith('; Override launch') or ln.startswith('; grid=ceil'):
            continue
        head.append(ln)
        if ln.startswith('.amdgcn_target'):
            break
    s = '\n'.join(head) + '\n'
    seen = set()
    for label, _, _, text in parts:
        if label in seen:
            continue
        seen.add(label)
        s += text
    open(out, 'w').write(s)
    return len(s)


def default_parts(**kw):
    with contextlib.redirect_stdout(io.StringIO()):
        return [('kv_kernel', 256, gen_k1.LDS_BYTES, gen_k1.gen(**kw.get('k1', {}))),
                ('attn_kernel', 256, gen_k2.LDS_BYTES, gen_k2.gen(**kw.get('k2', {}))),
                ('oproj_kernel', 256, gen_k35.LDS_BYTES, gen_k35.gen('o', **kw.get('k3', {}))),
                ('ffn_kernel', 256, gen_k4.LDS_BYTES, gen_k4.gen(**kw.get('k4', {}))),
                ('down_kernel', 240, gen_k35.LDS_BYTES, gen_k35.gen('d', **kw.get('k5', {})))]


if __name__ == '__main__':
    out = sys.argv[1] if len(sys.argv) > 1 else OUT
    print(build(default_parts(), out), 'bytes')
```

```python
from asmgen import *

WS_KV = 0
WS_XN = 32 << 20
WS_CTX = 36 << 20
WS_H = 54 << 20
WS_ST = 58 << 20
WS_FF = 60 << 20
WS_SIZE = 268435456
XN_SCALE = 1.4426950408889634 / (128 ** 0.5)

KA_X, KA_CKV, KA_WQ, KA_WUK, KA_WUV, KA_WO, KA_BX, KA_WG, KA_WU, KA_WD, KA_OUT, KA_DBG, KA_WS = [8 * i for i in range(13)]


def srd(b, s, ptr, size, off=0):
    if off:
        b.add(f's_add_u32 s{s}, s{ptr}, {off}')
        b.add(f's_addc_u32 s{s+1}, s{ptr+1}, 0')
    else:
        b.add(f's_mov_b32 s{s}, s{ptr}')
        b.add(f's_mov_b32 s{s+1}, s{ptr+1}')
    b.add(f's_mov_b32 s{s+2}, {size}')
    b.add(f's_mov_b32 s{s+3}, 0x00020000')


def vr(base, n):
    return f'v[{base}:{base+n-1}]' if n > 1 else f'v{base}'


def ar(base, n):
    return f'a[{base}:{base+n-1}]' if n > 1 else f'a{base}'


def sr(base, n):
    return f's[{base}:{base+n-1}]' if n > 1 else f's{base}'


WS_TS = 100 << 20


def ts_begin(b):
    b.add('s_memrealtime s[96:97]')


TS_MODE = ['ws']


def ts_end(b, kidx):
    if TS_MODE[0] == 'dbg':
        b.add('s_waitcnt vmcnt(0) lgkmcnt(0)')
        b.add('s_memrealtime s[98:99]')
        b.add(f's_load_dwordx2 s[92:93], s[0:1], {KA_DBG}')
        b.add('s_waitcnt lgkmcnt(0)')
        b.add(f's_sub_u32 s92, s92, {kidx * 512}')
        b.add('s_subb_u32 s93, s93, 0')
        b.add('s_mov_b32 s94, 64')
        b.add('s_mov_b32 s95, 0x00020000')
        b.add('v_mov_b32 v4, s96')
        b.add('v_mov_b32 v5, s98')
        b.add('v_lshlrev_b32 v8, 10, v0')
        b.add('s_lshl_b32 s91, s2, 10')
        b.add('v_add_u32 v8, s91, v8')
        b.add(f'buffer_store_dwordx2 v[4:5], v8, s[92:95], 0 offen offset:{8 * kidx} sc1')
        return
    b.add('s_waitcnt vmcnt(0) lgkmcnt(0)')
    b.add('s_memrealtime s[98:99]')
    b.add(f's_load_dwordx2 s[92:93], s[0:1], {KA_WS}')
    b.add('s_waitcnt lgkmcnt(0)')
    b.add(f's_add_u32 s92, s92, {WS_TS + kidx * 512 * 64}')
    b.add('s_addc_u32 s93, s93, 0')
    b.add('s_mov_b32 s94, 32768')
    b.add('s_mov_b32 s95, 0x00020000')
    b.add('v_mov_b32 v4, s96')
    b.add('v_mov_b32 v5, s97')
    b.add('v_mov_b32 v6, s98')
    b.add('v_mov_b32 v7, s99')
    b.add('v_lshrrev_b32 v8, 6, v0')
    b.add('v_lshlrev_b32 v8, 4, v8')
    b.add('s_lshl_b32 s91, s2, 6')
    b.add('v_add_u32 v8, s91, v8')
    b.add('buffer_store_dwordx4 v[4:7], v8, s[92:95], 0 offen')


def stamp(k):
    x = I(f's_memtime s[{60+2*k}:{61+2*k}]')
    x.kind = 'ctl'; x.rd = set(); x.wr = set()
    return x


def stamps_out(b, n, ptr_off=WS_TS + (8 << 20)):
    b.add('s_waitcnt vmcnt(0) lgkmcnt(0)')
    b.add(f's_load_dwordx2 s[4:5], s[0:1], {KA_WS}')
    b.add('s_waitcnt lgkmcnt(0)')
    b.add(f's_add_u32 s4, s4, {ptr_off}')
    b.add('s_addc_u32 s5, s5, 0')
    b.add('s_mov_b32 s6, 0x1000000')
    b.add('s_mov_b32 s7, 0x00020000')
    b.add('v_lshrrev_b32 v8, 6, v0')
    b.add('v_lshlrev_b32 v8, 7, v8')
    b.add('s_lshl_b32 s8, s2, 9')
    b.add('v_add_u32 v8, s8, v8')
    for k in range(n):
        b.add(f'v_mov_b32 v4, s{60+2*k}')
        b.add(f'buffer_store_dword v4, v8, s[4:7], 0 offen offset:{4*k}')

WS_CS = WS_ST + (1 << 20)
WS_R2 = WS_ST + (512 << 10)


def prefetch_addr(b_add, vPF, sWave, sTmp, vl, stride, nload):
    b_add(f's_lshl_b32 s{sTmp}, s2, 2')
    b_add(f's_add_u32 s{sTmp}, s{sTmp}, s{sWave}')
    b_add(f's_mul_i32 s{sTmp}, s{sTmp}, {64 * stride}')
    b_add(f'v_mul_u32_u24 v{vPF}, {stride}, v{vl}')
    b_add(f'v_add_u32 v{vPF}, s{sTmp}, v{vPF}')
    for n in range(1, nload):
        b_add(f'v_add_u32 v{vPF+n}, {n * 1024 * 64 * stride}, v{vPF}')


def prefetch_loads(sSrd, sPtr, size, vPF, vDst, stride):
    n = -(-size // (1024 * 64 * stride))
    out = [I(f's_mov_b32 s{sSrd}, s{sPtr}'), I(f's_mov_b32 s{sSrd+1}, s{sPtr+1}'),
           I(f's_mov_b32 s{sSrd+2}, {size}'), I(f's_mov_b32 s{sSrd+3}, 0x00020000')]
    for k in range(n):
        x = I(f'buffer_load_dword v{vDst}, v{vPF+k}, s[{sSrd}:{sSrd+3}], 0 offen')
        x.wr = set()
        out.append(x)
    return out
```

```python
from common import *

NAME = 'kv_kernel'
LDS_W = 0
LDS_C = 65536
LDS_BYTES = 65536 + 4 * 24576


def gen(store_mod='sc1', mapping='8x4', ln=True, NRING=8, LOOK=4, ts=False, st_=False, nobar=False, nodma=False, pfq=0, pf0=None):
    sC, sWK, sWV, sX, sO = 16, 20, 24, 28, 32
    sW, sH, sKB = 36, 37, 38
    sWM, sCM = 39, 40
    sSO = 41
    sK4 = 44
    sCO = 52
    sT = 54

    def accK(nt, kt): return (nt * 2 + kt) * 16
    def accV(p, dt, kt): return (128 if p == 0 else 0) + (dt * 2 + kt) * 16
    def cfr(kt, S): return (S * 2 + kt) * 4
    vWF = 192
    vRK, vRV, vDK, vDV, vST = 224, 228, 230, 234, 238
    vTMP = 240
    vL = 248
    vRC, vDC = 128, 132

    P = Block()
    P.add('s_cmp_ge_u32 s2, 256')
    P.add('s_cbranch_scc1 K1_END')
    if ts:
        ts_begin(P)
        P.add('v_mov_b32 v255, v0')
    P.add(f's_load_dwordx2 s[4:5], s[0:1], {KA_X}')
    P.add(f's_load_dwordx2 s[6:7], s[0:1], {KA_CKV}')
    P.add(f's_load_dwordx4 s[8:11], s[0:1], {KA_WUK}')
    P.add(f's_load_dwordx2 s[12:13], s[0:1], {KA_WS}')
    if pfq:
        P.add(f's_load_dwordx2 s[14:15], s[0:1], {KA_WQ}')
    l, w, t0, t1, t2, t3 = vL, vL + 1, vL + 2, vL + 3, vL + 4, vL + 5
    P.add(f'v_and_b32 v{l}, 63, v0')
    P.add(f'v_lshrrev_b32 v{w}, 6, v0')
    P.add(f'v_readfirstlane_b32 s{sW}, v{w}')
    P.add(f's_and_b32 s{sT}, s2, 7')
    P.add(f's_lshr_b32 s{sT+1}, s2, 3')
    if mapping == '8x4':
        P.add(f's_and_b32 s{sH}, s{sT}, 3')
        P.add(f's_lshl_b32 s{sH}, s{sH}, 3')
        P.add(f's_and_b32 s{sT+2}, s{sT+1}, 7')
        P.add(f's_add_u32 s{sH}, s{sH}, s{sT+2}')
        P.add(f's_lshr_b32 s{sKB}, s{sT}, 2')
        P.add(f's_lshl_b32 s{sKB}, s{sKB}, 2')
        P.add(f's_lshr_b32 s{sT+2}, s{sT+1}, 3')
        P.add(f's_add_u32 s{sKB}, s{sKB}, s{sT+2}')
    else:
        P.add(f's_lshl_b32 s{sH}, s{sT}, 2')
        P.add(f's_and_b32 s{sT+2}, s{sT+1}, 3')
        P.add(f's_add_u32 s{sH}, s{sH}, s{sT+2}')
        P.add(f's_lshr_b32 s{sKB}, s{sT+1}, 2')
    P.add(f's_lshl_b32 s{sWM}, s{sW}, 12')
    P.add(f's_mul_i32 s{sCM}, s{sW}, 24576')
    P.add(f's_add_u32 s{sCM}, s{sCM}, {LDS_C}')
    for k in range(1, 8):
        P.add(f's_movk_i32 s{sK4+k-1}, {4096*k}')
    P.add(f's_lshl_b32 s{sT}, s{sKB}, 2')
    P.add(f's_add_u32 s{sT}, s{sT}, s{sW}')
    P.add(f's_lshl_b32 s{sT+1}, s{sT}, 16')
    P.add(f'v_lshrrev_b32 v{t0}, 3, v{l}')
    P.add(f'v_lshlrev_b32 v{t0}, 10, v{t0}')
    P.add(f'v_add_u32 v{t0}, s{sT+1}, v{t0}')
    P.add(f'v_and_b32 v{t1}, 7, v{l}')
    P.add(f'v_lshrrev_b32 v{t2}, 4, v{l}')
    P.add(f'v_xor_b32 v{t1}, v{t1}, v{t2}')
    P.add(f'v_lshlrev_b32 v{t3}, 4, v{t1}')
    P.add(f'v_add_u32 v{vDC}, v{t0}, v{t3}')
    P.add(f'v_xor_b32 v{t3}, 64, v{t3}')
    P.add(f'v_add_u32 v{vDC+1}, v{t0}, v{t3}')
    for i in range(7, 0, -1):
        P.add(f'v_add_u32 v{vDC+i}, {8192*i - 1024*(i&3)}, v{vDC+(i&1)}')
    P.add(f's_lshl_b32 s{sT+2}, s{sH}, 8')
    P.add(f's_lshl_b32 s{sT+3}, s{sW}, 17')
    P.add(f's_add_u32 s{sT+3}, s{sT+3}, s{sT+2}')
    P.add(f'v_lshlrev_b32 v{t0}, 13, v{t2}')
    P.add(f'v_add_u32 v{t0}, s{sT+3}, v{t0}')
    P.add(f'v_and_b32 v{t1}, 15, v{l}')
    P.add(f'v_lshlrev_b32 v{t3}, 2, v{t2}')
    P.add(f'v_xor_b32 v{t1}, v{t1}, v{t3}')
    P.add(f'v_lshlrev_b32 v{t1}, 4, v{t1}')
    P.add(f'v_add_u32 v{vDK}, v{t0}, v{t1}')
    for i in range(1, 4):
        P.add(f'v_add_u32 v{vDK+i}, {(32768-1024)*i}, v{vDK}')
    P.add(f's_lshl_b32 s{sT+3}, s{sW}, 18')
    P.add(f's_add_u32 s{sT+3}, s{sT+3}, s{sT+2}')
    P.add(f'v_lshrrev_b32 v{t0}, 3, v{l}')
    P.add(f'v_lshlrev_b32 v{t0}, 13, v{t0}')
    P.add(f'v_add_u32 v{t0}, s{sT+3}, v{t0}')
    P.add(f'v_and_b32 v{t1}, 1, v{t2}')
    P.add(f'v_lshlrev_b32 v{t1}, 2, v{t1}')
    P.add(f'v_and_b32 v{t3}, 7, v{l}')
    P.add(f'v_xor_b32 v{t1}, v{t1}, v{t3}')
    P.add(f'v_lshlrev_b32 v{t1}, 4, v{t1}')
    P.add(f'v_add_u32 v{vDV}, v{t0}, v{t1}')
    for i in range(1, 4):
        P.add(f'v_add_u32 v{vDV+i}, {(65536-1024)*i}, v{vDV}')
    srd(P, sC, 6, 2097152)
    srd(P, sWK, 8, 4194304)
    srd(P, sWV, 10, 4194304)
    srd(P, sX, 4, 2359296)
    srd(P, sO, 12, WS_XN + 64 * 36 * 1024)

    def dmaC(chunk):
        slot = chunk % 3
        out = []
        out.append(I(f's_add_u32 m0, s{sCM}, {slot*8192}'))
        out.append(I(f's_movk_i32 s{sCO}, {chunk*128}'))
        for i in range(8):
            if i == 4:
                out.append(I(f's_add_u32 m0, s{sCM}, {slot*8192+4096}'))
            out.append(I(f'buffer_load_dwordx4 v{vDC+i}, s[{sC}:{sC+3}], s{sCO} offen offset:{1024*(i&3)} lds',
                         grp='C', newgrp=(i == 0)))
        return out

    def dmaW(st):
        slot = st % 4
        out = [I(f's_add_u32 m0, s{sWM}, {slot*16384}')]
        if st < 8:
            out.append(I(f's_mov_b32 s{sSO}, {st*524288}'))
            vo, sd = vDK, sWK
        else:
            p, q = (st - 8) // 4, (st - 8) % 4
            out.append(I(f's_mov_b32 s{sSO}, {q*128*8192 + p*128}'))
            vo, sd = vDV, sWV
        for i in range(4):
            out.append(I(f'buffer_load_dwordx4 v{vo+i}, s[{sd}:{sd+3}], s{sSO} offen offset:{1024*i} lds',
                         grp='W', newgrp=(i == 0)))
        return out

    vPF = 140
    def dummy(txt):
        x = I(txt); x.wr = set()
        return x
    burst = []
    if pf0:
        assert mapping == '8x4'
        first = {'mid': 1, 'late': 3, 'pre': 0}[pf0]
        ns = 8 - first
        nl = ns * 8
        P.add(f's_lshr_b32 s{sT+2}, s2, 3')
        P.add(f's_lshl_b32 s{sT+2}, s{sT+2}, 2')
        P.add(f's_add_u32 s{sT+2}, s{sT+2}, s{sW}')
        P.add(f's_mul_i32 s{sT+3}, s{sT+2}, {nl}')
        P.add(f'v_add_u32 v{t0}, s{sT+3}, v{l}')
        P.add(f'v_mov_b32 v{t3}, 0x7f000000')
        P.add(f'v_cmp_gt_u32 vcc, {nl}, v{l}')
        P.add(f's_and_b32 s{sT+3}, s2, 3')
        P.add(f's_lshl_b32 s{sT+3}, s{sT+3}, 11')
        P.add(f's_add_u32 s{sT+3}, s{sT+3}, {64 * first * 8192}')
        P.add(f'v_lshrrev_b32 v{t1}, 4, v{t0}')
        P.add(f'v_lshlrev_b32 v{t1}, 13, v{t1}')
        P.add(f'v_and_b32 v{t2}, 15, v{t0}')
        P.add(f'v_lshl_add_u32 v{t1}, v{t2}, 7, v{t1}')
        P.add(f'v_add_u32 v{t1}, s{sT+3}, v{t1}')
        P.add(f'v_cndmask_b32 v{vPF}, v{t3}, v{t1}, vcc')
        P.add(f's_bfe_u32 s{sT+3}, s2, 0x10002')
        P.add(f's_lshl_b32 s{sT+3}, s{sT+3}, 10')
        P.add(f's_lshl_b32 s{sT+2}, s{sT+2}, 3')
        P.add(f's_add_u32 s{sT+3}, s{sT+3}, s{sT+2}')
        P.add(f's_lshl_b32 s{sT+3}, s{sT+3}, 10')
        P.add(f's_add_u32 s{sT+3}, s{sT+3}, {128 * first}')
        P.add(f'v_and_b32 v{t1}, 7, v{l}')
        P.add(f'v_lshlrev_b32 v{t1}, 10, v{t1}')
        P.add(f'v_lshrrev_b32 v{t2}, 3, v{l}')
        P.add(f'v_lshl_add_u32 v{t1}, v{t2}, 7, v{t1}')
        P.add(f'v_add_u32 v{t1}, s{sT+3}, v{t1}')
        P.add(f'v_cndmask_b32 v{vPF+1}, v{t3}, v{t1}, vcc')
        burst = [I(f'buffer_load_dword v{vPF+2}, v{vPF}, s[{sWK}:{sWK+3}], 0 offen'),
                 I(f'buffer_load_dword v{vPF+3}, v{vPF+1}, s[{sC}:{sC+3}], 0 offen')]
    if pf0 == 'pre':
        P.add(burst)
    P.add(dmaC(0)); P.add(dmaW(0))
    if pf0 == 'mid':
        P.add(burst)
    P.add(dmaW(1)); P.add(dmaC(1)); P.add(dmaW(2)); P.add(dmaC(2))
    if pf0 == 'late':
        P.add(burst)
    if burst:
        for x in burst:
            pass
    r = t0
    P.add(f'v_bfe_u32 v{r}, v{l}, 2, 2')
    P.add(f'v_lshrrev_b32 v{t1}, 5, v{l}')
    P.add(f'v_lshl_add_u32 v{t1}, v{t1}, 3, v{r}')
    P.add(f'v_bfe_u32 v{t2}, v{l}, 4, 1')
    P.add(f'v_lshlrev_b32 v{t2}, 5, v{t2}')
    P.add(f'v_and_b32 v{t3}, 3, v{l}')
    P.add(f'v_lshl_add_u32 v{t2}, v{t3}, 3, v{t2}')
    P.add(f'v_lshl_add_u32 v{t3}, v{t1}, 8, v{t2}')
    for nt in range(4):
        P.add(f'v_xor_b32 v{vRK+nt}, {nt}, v{r}')
        P.add(f'v_lshl_add_u32 v{vRK+nt}, v{vRK+nt}, 6, v{t3}')
    P.add(f'v_lshl_add_u32 v{t3}, v{t1}, 7, v{t2}')
    P.add(f'v_lshrrev_b32 v{r}, 1, v{r}')
    for dt in range(2):
        P.add(f'v_xor_b32 v{vRV+dt}, {dt}, v{r}')
        P.add(f'v_lshl_add_u32 v{vRV+dt}, v{vRV+dt}, 6, v{t3}')
    P.add(f'v_and_b32 v{t1}, 31, v{l}')
    P.add(f'v_lshlrev_b32 v{t2}, 7, v{t1}')
    P.add(f'v_add_u32 v{t2}, s{sCM}, v{t2}')
    P.add(f'v_bfe_u32 v{t1}, v{l}, 1, 3')
    P.add(f'v_lshrrev_b32 v{t3}, 5, v{l}')
    P.add(f'v_xor_b32 v{t1}, v{t1}, v{t3}')
    for ks in range(4):
        P.add(f'v_xor_b32 v{vRC+ks}, {2*ks}, v{t1}')
        P.add(f'v_lshl_add_u32 v{vRC+ks}, v{vRC+ks}, 4, v{t2}')
    P.add(f's_lshl_b32 s{sT+2}, s{sH}, 5')
    P.add(f's_add_u32 s{sT+2}, s{sT+2}, s{sT}')
    P.add(f's_lshl_b32 s{sT+2}, s{sT+2}, 15')
    P.add(f'v_lshlrev_b32 v{vST}, 4, v{l}')
    P.add(f'v_add_u32 v{vST}, s{sT+2}, v{vST}')

    def rdC(chunk):
        slot = chunk % 3
        out = []
        for ks in range(4):
            for kt in range(2):
                out.append(I(f'ds_read_b128 {ar(cfr(kt, chunk*4+ks), 4)}, v{vRC+ks} offset:{slot*8192 + kt*4096}',
                             grp='Cr', newgrp=(ks == 0 and kt == 0)))
        return out

    def rdW(F):
        st, f = F // 16, F % 16
        slot = st % 4
        dst = vWF + (F % NRING) * 4
        if st < 8:
            ks, nt = f // 4, f % 4
            a, off, h2 = vRK + nt, slot * 16384 + ks * 4096, 1024
        else:
            ks, dt = f // 2, f % 2
            a, off, h2 = vRV + dt, slot * 16384 + ks * 2048, 512
        return [I(f'ds_read_b64_tr_b16 {vr(dst, 2)}, v{a} offset:{off}'),
                I(f'ds_read_b64_tr_b16 {vr(dst+2, 2)}, v{a} offset:{off+h2}')]

    P.need(('C', 'abs', 0))
    P.add(rdC(0))
    P.need(('W', 'abs', 0))
    P.add('s_barrier')
    for F in range(LOOK):
        P.add(rdW(F))

    S = Sched()
    for st in range(16):
        g0 = st * 32
        for f in range(16):
            F = st * 16 + f
            wf = vr(vWF + (F % NRING) * 4, 4)
            for kt in range(2):
                if st < 8:
                    ks, nt = f // 4, f % 4
                    acc = vr(accK(nt, kt), 16)
                    first = (st == 0 and ks == 0)
                    S.mf(f'v_mfma_f32_32x32x16_bf16 {acc}, {wf}, {ar(cfr(kt, st*4+ks), 4)}, {"0" if first else acc}')
                else:
                    p, q = (st - 8) // 4, (st - 8) % 4
                    ks, dt = f // 2, f % 2
                    acc = vr(accV(p, dt, kt), 16)
                    first = (q == 0 and ks == 0)
                    S.mf(f'v_mfma_f32_32x32x16_bf16 {acc}, {ar(cfr(kt, q*8+ks), 4)}, {wf}, {"0" if first else acc}')
            if F + LOOK < 256:
                a, b = rdW(F + LOOK)
                nxt_stage = (F + LOOK) // 16 > st
                S.at(g0 + 2 * f, a)
                S.at(g0 + 2 * f + 1, b)
        gb = g0 + 2 * (16 - LOOK) - 6
        if st + 1 < 16:
            S.at(gb, I('', need=[('W', 'abs', st + 1)]), prio=5)
            S.at(gb, I('s_barrier'), prio=5)
            if st + 3 < 16:
                d = dmaW(st + 3)
                S.at(gb + 1, d[0:2])
                for i in range(4):
                    S.at(gb + 2 + 2 * i, d[2 + i])
        if st < 7:
            rc = rdC(st + 1)
            S.at(g0 + 14, I('', need=[('C', 'abs', st + 1)]), prio=-1)
            rc_g = [g0 + 14 + 2 * i for i in range(8)]
            for i in range(8):
                S.at(rc_g[i], rc[i])
            if st + 3 <= 7:
                d = dmaC(st + 3)
                gs = g0 + 2
                S.at(gs, I('', need=[('Cr', 'abs', st)]), prio=0)
                k = 0
                S.at(gs, d[0:2], prio=0)
                idx = 2
                gg = gs + 1
                for i in range(8):
                    if i == 4:
                        S.at(gg - 1, d[idx]); idx += 1
                    S.at(gg, d[idx]); idx += 1
                    gg += 2
    tmp = [0]

    def drain(base, fidx):
        t = vTMP + 4 * (tmp[0] % 2)
        tmp[0] += 1
        out = [I(f'v_cvt_pk_bf16_f32 v{t+j}, v{base+2*j}, v{base+2*j+1}') for j in range(4)]
        so = '0' if fidx < 4 else f's{sK4 + fidx // 4 - 1}'
        out.append(I(f'buffer_store_dwordx4 {vr(t,4)}, v{vST}, s[{sO}:{sO+3}], {so} offen offset:{(fidx%4)*1024} {store_mod}'))
        return out

    items = []
    for nt in (2, 3, 0, 1):
        for kt in range(2):
            for rg in range(2):
                items.append(drain(accK(nt, kt) + 8 * rg, kt * 8 + 2 * nt + rg))
    g = 8 * 32 + 1
    for k, it in enumerate(items):
        gg = g + k * 8 - (1 if k else 0) * 0
        for j in range(4):
            S.at(gg + j, it[j])
        S.at(gg + 5, it[4])
    items = []
    for dt in range(2):
        for kt in range(2):
            for rg in range(2):
                items.append(drain(accV(0, dt, kt) + 8 * rg, 16 + dt * 4 + 2 * kt + rg))
    g = 12 * 32 + 1
    for k, it in enumerate(items):
        gg = g + k * 14
        for j in range(4):
            S.at(gg + j, it[j])
        S.at(gg + 5, it[4])

    if ln:
        vX, vU = 64, 76
        vS1, vS2, vA, vB = 100, 101, 102, 103
        vXO, vSO, vLA = 104, 105, 106
        vP = 108
        vO = 116
        q = []
        q.append(f's_min_u32 s{sT}, s{sW}, 2')
        q.append(f's_mul_i32 s{sT+1}, s{sT}, 384')
        q.append(f's_mul_i32 s{sT+2}, s2, {8*1152}')
        q.append(f's_add_u32 s{sT+1}, s{sT+1}, s{sT+2}')
        q.append(f'v_and_b32 v{vA}, 7, v{l}')
        q.append(f'v_lshrrev_b32 v{vB}, 3, v{l}')
        q.append(f'v_mul_u32_u24 v{vXO}, 1152, v{vA}')
        q.append(f'v_lshl_add_u32 v{vXO}, v{vB}, 4, v{vXO}')
        q.append(f'v_add_u32 v{vXO}, s{sT+1}, v{vXO}')
        for i in range(3):
            q.append(f'buffer_load_dwordx4 {vr(vX+4*i,4)}, v{vXO}, s[{sX}:{sX+3}], 0 offen offset:{128*i}')
        q.append(f's_lshr_b32 s{sT+1}, s2, 2')
        q.append(f's_mul_i32 s{sT+1}, s{sT+1}, 36864')
        q.append(f's_mul_i32 s{sT+2}, s{sT}, 12288')
        q.append(f's_add_u32 s{sT+1}, s{sT+1}, s{sT+2}')
        q.append(f's_and_b32 s{sT+2}, s2, 3')
        q.append(f's_lshl_b32 s{sT+2}, s{sT+2}, 7')
        q.append(f's_add_u32 s{sT+1}, s{sT+1}, s{sT+2}')
        q.append(f's_add_u32 s{sT+1}, s{sT+1}, {WS_XN}')
        q.append(f'v_lshrrev_b32 v{vSO}, 1, v{vB}')
        q.append(f'v_lshlrev_b32 v{vSO}, 10, v{vSO}')
        q.append(f'v_and_b32 v{vB}, 1, v{vB}')
        q.append(f'v_lshl_add_u32 v{vSO}, v{vB}, 9, v{vSO}')
        q.append(f'v_lshl_add_u32 v{vSO}, v{vA}, 4, v{vSO}')
        q.append(f'v_add_u32 v{vSO}, s{sT+1}, v{vSO}')
        q.append(f'v_lshlrev_b32 v{vLA}, 3, v{vA}')
        q.append(f'v_add_u32 v{vLA}, {LDS_C}, v{vLA}')
        q.append(f's_lshl_b32 s{sT+2}, s{sW}, 6')
        q.append(f'v_add_u32 v{vLA+1}, s{sT+2}, v{vLA}')
        S.pack([I(x) for x in q], 10 * 32 + 2, 11 * 32 + 20, cap=3)
        q = []
        for j in range(12):
            q.append(f'v_lshlrev_b32 v{vU+2*j}, 16, v{vX+j}')
            q.append(f'v_and_b32 v{vU+2*j+1}, 0xffff0000, v{vX+j}')
        q.append(f'v_add_f32 v{vS1}, v{vU}, v{vU+1}')
        q.append(f'v_mul_f32 v{vS2}, v{vU}, v{vU}')
        q.append(f'v_fmac_f32 v{vS2}, v{vU+1}, v{vU+1}')
        for j in range(2, 24):
            q.append(f'v_add_f32 v{vS1}, v{vS1}, v{vU+j}')
            q.append(f'v_fmac_f32 v{vS2}, v{vU+j}, v{vU+j}')
        for sx in (vS1, vS2):
            q.append(f'v_add_f32_dpp v{sx}, v{sx}, v{sx} row_ror:8 row_mask:0xf bank_mask:0xf')
        for sw in ('v_permlane16_swap_b32', 'v_permlane32_swap_b32'):
            q.append(f'v_mov_b32 v{vA}, v{vS1}')
            q.append(f'v_mov_b32 v{vB}, v{vS2}')
            q.append(f'{sw} v{vA}, v{vS1}')
            q.append(f'{sw} v{vB}, v{vS2}')
            q.append(f'v_add_f32 v{vS1}, v{vS1}, v{vA}')
            q.append(f'v_add_f32 v{vS2}, v{vS2}, v{vB}')
        q.append(f'ds_write_b64 v{vLA+1}, {vr(vS1,2)}')
        gl = S.pack([I(x) for x in q], 12 * 32 + 0, 13 * 32 + 14, cap=4)
        assert gl < 13 * 32 + 2 * (16 - LOOK) - 6, gl
        gb13 = 13 * 32 + 2 * (16 - LOOK) - 6
        S.at(gb13, I('', need=[('lgkm', 0)]), prio=4)
        q = []
        for k in range(3):
            q.append(f'ds_read_b64 {vr(vP+2*k,2)}, v{vLA} offset:{64*k}')
        q.append(f'v_add_f32 v{vS1}, v{vP}, v{vP+2}')
        q.append(f'v_add_f32 v{vS2}, v{vP+1}, v{vP+3}')
        q.append(f'v_add_f32 v{vS1}, v{vS1}, v{vP+4}')
        q.append(f'v_add_f32 v{vS2}, v{vS2}, v{vP+5}')
        q.append(f'v_mul_f32 v{vS1}, {1.0/576!r}, v{vS1}')
        q.append(f'v_mul_f32 v{vS2}, {1.0/576!r}, v{vS2}')
        q.append(f'v_fma_f32 v{vS2}, -v{vS1}, v{vS1}, v{vS2}')
        q.append(f'v_max_f32 v{vS2}, 0, v{vS2}')
        q.append(f'v_add_f32 v{vS2}, {1e-5!r}, v{vS2}')
        q.append(f'v_rsq_f32 v{vS2}, v{vS2}')
        q.append(f'v_mul_f32 v{vS2}, {XN_SCALE!r}, v{vS2}')
        q.append(f'v_mul_f32 v{vS1}, v{vS1}, v{vS2}')
        for i in range(3):
            for j in range(4):
                k = (4 * i + j) * 2
                q.append(f'v_fma_f32 v{vU+k}, v{vU+k}, v{vS2}, -v{vS1}')
                q.append(f'v_fma_f32 v{vU+k+1}, v{vU+k+1}, v{vS2}, -v{vS1}')
                q.append(f'v_cvt_pk_bf16_f32 v{vO+4*i+j}, v{vU+k}, v{vU+k+1}')
            so = '0' if i == 0 else f's{sK4+i-1}'
            q.append(f'buffer_store_dwordx4 {vr(vO+4*i,4)}, v{vSO}, s[{sO}:{sO+3}], {so} offen {store_mod}')
        S.pack([I(x) for x in q], gb13 + 2, 16 * 32 - 2, cap=4)

    if pfq:
        va, vb = 254, 239
        q = [f's_lshr_b32 s{sT+2}, s2, 3', f's_lshl_b32 s{sT+2}, s{sT+2}, 2', f's_add_u32 s{sT+2}, s{sT+2}, s{sW}',
             f's_mul_i32 s{sT+2}, s{sT+2}, 36', f'v_add_u32 v{va}, s{sT+2}, v{l}',
             f'v_lshrrev_b32 v{vb}, 3, v{va}', f'v_lshlrev_b32 v{vb}, 13, v{vb}',
             f'v_and_b32 v{va}, 7, v{va}', f'v_lshl_add_u32 v{va}, v{va}, 7, v{vb}',
             f's_and_b32 s{sT+2}, s2, 7', f's_lshl_b32 s{sT+2}, s{sT+2}, 10', f'v_add_u32 v{va}, s{sT+2}, v{va}',
             f'v_mov_b32 v{vb}, 0x7f000000', f'v_cmp_gt_u32 vcc, 36, v{l}', f's_mov_b32 s{sC}, s14',
             f's_mov_b32 s{sC+1}, s15', f'v_cndmask_b32 v{va}, v{vb}, v{va}, vcc', f's_mov_b32 s{sC+2}, {576 * 8192}']
        q = [I(x) for x in q] + [I(f'buffer_load_dword v{vb}, v{va}, s[{sC}:{sC+3}], 0 offen')]
        S.pack(q, pfq * 32 + 1, pfq * 32 + 30, cap=3)
    if st_:
        for st in range(16):
            S.at(st * 32 - 1, stamp(st + 1), prio=9)
        P.insert(2, stamp(0))
    M = S.block()
    E = Block()
    for dt in range(2):
        for kt in range(2):
            for rg in range(2):
                E.add(drain(accV(1, dt, kt) + 8 * rg, 16 + (2 + dt) * 4 + 2 * kt + rg))
    if st_:
        E.add(stamp(17 - 1 + 0)) if False else None
    if ts:
        E.add('v_mov_b32 v0, v255')
        ts_end(E, 0)
    if st_:
        stamps_out(E, 17)
    E.add('K1_END:')
    E.add('s_endpgm')
    blocks = [P, M, E]
    resolve_waits([blocks])
    resolve_hazards([blocks], name='K1')
    print('K1 estimate (cycles, mfma, overfull gaps):', estimate(P), estimate(M), estimate(E))
    return kernel_text(NAME, blocks, vgpr=512, acc=256)


if __name__ == '__main__':
    open('k1.s', 'w').write(gen(ts=True, st_=True))
```

```python
from common import *

NAME = 'attn_kernel'
LDS_BYTES = 163840
WQ_RING = 98304
NEG_BIG = -1.0e30


def gen(store_mod='sc1', ts=False, fallback_on=True, st_=False, pf=13, pfgap=1, pfin='DS'):
    sWQ, sXN, sKV, sCT = 16, 20, 24, 28
    sW, sH, sJ = 36, 37, 38
    sWM = 39
    sSO = 40
    sKM = 41
    s4096, s32K = 42, 43
    sU = 44
    sF1, sF2 = 45, 46
    sCnt = 47
    sT = 48
    sXO = 56
    QA, QB = 0, 32
    S0, S1 = 64, 96
    P0, P1 = 128, 144
    MA, MB = 160, 176
    TB_, CM = 192, 208
    vl, vLA, vLB = 224, 225, 226
    vKa, vKb = 227, 228
    vKD = 229
    vT = 230
    vRK, vDK, vXA = 240, 244, 248
    OA, OB = 0, 64
    RING = 128

    def Q(b): return QA if b == 0 else QB
    def O(b): return OA if b == 0 else OB
    def M(b): return MA if b == 0 else MB
    def L(b): return vLA if b == 0 else vLB

    P = Block()
    P.add('s_cmp_ge_u32 s2, 256')
    P.add('s_cbranch_scc1 K2_END')
    if ts:
        ts_begin(P)
        P.add('v_mov_b32 v255, v0')
    if st_:
        P.add(stamp(0))
    P.add(f's_load_dwordx2 s[4:5], s[0:1], {KA_WQ}')
    P.add(f's_load_dwordx2 s[6:7], s[0:1], {KA_WS}')
    if pf:
        P.add(f's_load_dwordx2 s[72:73], s[0:1], {KA_WO}')
        P.add(f's_load_dwordx2 s[74:75], s[0:1], {KA_WD}')
        P.add(f's_load_dwordx4 s[76:79], s[0:1], {KA_WG}')
    l, t0, t1, t2, t3 = vl, vT, vT + 1, vT + 2, vT + 3
    P.add(f'v_and_b32 v{l}, 63, v0')
    P.add(f'v_lshrrev_b32 v{t0}, 6, v0')
    P.add(f'v_readfirstlane_b32 s{sW}, v{t0}')
    P.add(f's_and_b32 s{sT}, s2, 7')
    P.add(f's_lshr_b32 s{sT+1}, s2, 3')
    P.add(f's_lshl_b32 s{sH}, s{sT}, 2')
    P.add(f's_and_b32 s{sT+2}, s{sT+1}, 3')
    P.add(f's_add_u32 s{sH}, s{sH}, s{sT+2}')
    P.add(f's_lshr_b32 s{sJ}, s{sT+1}, 2')
    P.add(f's_lshl_b32 s{sWM}, s{sW}, 12')
    P.add(f's_add_u32 s{sWM}, s{sWM}, {WQ_RING}')
    P.add(f's_lshl_b32 s{sKM}, s{sW}, 13')
    P.add(f's_movk_i32 s{s4096}, 4096')
    P.add(f's_mov_b32 s{s32K}, 32768')
    P.add(f's_lshl_b32 s{sT+2}, s{sH}, 8')
    P.add(f's_lshl_b32 s{sT+3}, s{sW}, 17')
    P.add(f's_add_u32 s{sT+3}, s{sT+3}, s{sT+2}')
    P.add(f'v_lshrrev_b32 v{t2}, 4, v{l}')
    P.add(f'v_lshlrev_b32 v{t0}, 13, v{t2}')
    P.add(f'v_add_u32 v{t0}, s{sT+3}, v{t0}')
    P.add(f'v_and_b32 v{t1}, 15, v{l}')
    P.add(f'v_lshlrev_b32 v{t3}, 2, v{t2}')
    P.add(f'v_xor_b32 v{t1}, v{t1}, v{t3}')
    P.add(f'v_lshlrev_b32 v{t1}, 4, v{t1}')
    P.add(f'v_add_u32 v{vDK}, v{t0}, v{t1}')
    for i in range(1, 4):
        P.add(f'v_add_u32 v{vDK+i}, {(32768-1024)*i}, v{vDK}')
    P.add(f's_lshl_b32 s{sT+2}, s{sJ}, 2')
    P.add(f's_add_u32 s{sT+3}, s{sT+2}, s{sW}')
    P.add(f's_sub_u32 s{sT+4}, 60, s{sT+2}')
    P.add(f's_add_u32 s{sT+4}, s{sT+4}, s{sW}')
    P.add(f's_mul_i32 s{sT+5}, s{sT+3}, 36864')
    P.add(f's_mul_i32 s{sT+6}, s{sT+4}, 36864')
    P.add(f'v_lshlrev_b32 v{t0}, 4, v{l}')
    P.add(f'v_add_u32 v{vXA}, s{sT+5}, v{t0}')
    P.add(f'v_add_u32 v{vXA+1}, s{sT+6}, v{t0}')
    P.add(f'v_add_u32 v{vKD}, s{sKM}, v{t0}')
    P.add(f'v_mov_b32 v{vKb}, v{t0}')
    P.add(f'v_mov_b32 v{vKa}, v{t0}')
    srd(P, sWQ, 4, 576 * 8192)
    srd(P, sXN, 6, 64 * 36864, off=WS_XN)
    P.add(f's_lshl_b32 s{sT+2}, s{sH}, 20')
    P.add(f's_add_u32 s{sKV}, s6, s{sT+2}')
    P.add(f's_addc_u32 s{sKV+1}, s7, 0')
    P.add(f's_lshl_b32 s{sT+2}, s{sJ}, 16')
    P.add(f's_sub_u32 s{sKV+2}, {32*32768}, s{sT+2}')
    P.add(f's_mov_b32 s{sKV+3}, 0x00020000')
    srd(P, sCT, 6, 16 << 20, off=WS_CTX)

    def dmaW(c):
        out = [I(f's_add_u32 m0, s{sWM}, {(c % 4) * 16384}'),
               I(f's_mov_b32 s{sSO}, {c * 524288}')]
        for i in range(4):
            out.append(I(f'buffer_load_dwordx4 v{vDK+i}, s[{sWQ}:{sWQ+3}], s{sSO} offen offset:{1024*i} lds',
                         grp='W', newgrp=(i == 0)))
        return out

    def xfr(c, ks, b): return RING + (c % 4) * 32 + (ks * 2 + b) * 4

    def ldX(c):
        out = [I(f's_movk_i32 s{sXO}, {c * 4096}')] if c * 4096 < 32768 else [I(f's_mov_b32 s{sXO}, {c * 4096}')]
        for ks in range(4):
            for b in range(2):
                out.append(I(f'buffer_load_dwordx4 {ar(xfr(c, ks, b), 4)}, v{vXA+b}, s[{sXN}:{sXN+3}], s{sXO} offen offset:{1024*ks}'))
        return out

    def dmaKV():
        out = [I(f's_mov_b32 m0, s{sKM}')]
        for i in range(8):
            if i == 4:
                out.append(I(f's_add_u32 m0, s{sKM}, 4096'))
            so = '0' if i < 4 else f's{s4096}'
            out.append(I(f'buffer_load_dwordx4 v{vKD}, s[{sKV}:{sKV+3}], {so} offen offset:{1024*(i&3)} lds',
                         grp='KV', newgrp=(i == 0)))
        out.append(I(f'v_add_u32 v{vKD}, s{s32K}, v{vKD}'))
        out.append(I(f's_add_u32 s{sKM}, s{sKM}, s{s32K}'))
        out.append(I(f's_and_b32 s{sKM}, s{sKM}, 0x1ffff'))
        return out

    P.add(dmaW(0)); P.add(ldX(0)); P.add(dmaW(1)); P.add(ldX(1)); P.add(dmaW(2)); P.add(ldX(2))
    r = t0
    P.add(f'v_bfe_u32 v{r}, v{l}, 2, 2')
    P.add(f'v_lshrrev_b32 v{t1}, 5, v{l}')
    P.add(f'v_lshl_add_u32 v{t1}, v{t1}, 3, v{r}')
    P.add(f'v_bfe_u32 v{t2}, v{l}, 4, 1')
    P.add(f'v_lshlrev_b32 v{t2}, 5, v{t2}')
    P.add(f'v_and_b32 v{t3}, 3, v{l}')
    P.add(f'v_lshl_add_u32 v{t2}, v{t3}, 3, v{t2}')
    P.add(f'v_lshl_add_u32 v{t3}, v{t1}, 8, v{t2}')
    P.add(f'v_add_u32 v{t3}, {WQ_RING}, v{t3}')
    for nt in range(4):
        P.add(f'v_xor_b32 v{vRK+nt}, {nt}, v{r}')
        P.add(f'v_lshl_add_u32 v{vRK+nt}, v{vRK+nt}, 6, v{t3}')

    vPF, vPFd = 250, 252
    sPF = 80
    if pf:
        P.add(f's_and_b32 s{sT}, s{sH}, 3')
        P.add(f's_cmp_eq_u32 s{sT}, 0')
        P.add(f's_cselect_b32 s{sPF}, s72, s74')
        P.add(f's_cselect_b32 s{sPF+1}, s73, s75')
        P.add(f's_mov_b32 s{sPF+2}, 5308416')
        P.add(f's_cselect_b32 s{sPF+2}, 4718592, s{sPF+2}')
        P.add(f's_cmp_eq_u32 s{sT}, 2')
        P.add(f's_cselect_b32 s{sPF}, s76, s{sPF}')
        P.add(f's_cselect_b32 s{sPF+1}, s77, s{sPF+1}')
        P.add(f's_cmp_eq_u32 s{sT}, 3')
        P.add(f's_cselect_b32 s{sPF}, s78, s{sPF}')
        P.add(f's_cselect_b32 s{sPF+1}, s79, s{sPF+1}')
        P.add(f's_mov_b32 s{sPF+3}, 0x00020000')
        P.add(f's_lshr_b32 s{sT}, s{sH}, 2')
        P.add(f's_lshl_b32 s{sT}, s{sT}, 3')
        P.add(f's_add_u32 s{sT}, s{sT}, s{sJ}')
        P.add(f's_lshl_b32 s{sT}, s{sT}, 2')
        P.add(f's_add_u32 s{sT}, s{sT}, s{sW}')
        P.add(f's_mul_i32 s{sT}, s{sT}, {pf * 128}')
        P.add(f'v_lshlrev_b32 v{vPF}, 7, v{l}')
        P.add(f'v_add_u32 v{vPF}, s{sT}, v{vPF}')
        P.add(f'v_mov_b32 v{vPFd}, 0x7f000000')
        P.add(f'v_cmp_gt_u32 vcc, {pf}, v{l}')
        P.add(f'v_cndmask_b32 v{vPF}, v{vPFd}, v{vPF}, vcc')

    def pf_step():
        x = I(f'buffer_load_dword v{vPFd}, v{vPF}, s[{sPF}:{sPF+3}], 0 offen')
        x.wr = set()
        return [x, I(f'v_add_u32 v{vPF}, {256 * pf * 128}, v{vPF}')]
    QACC = 64
    WF = 192
    LOOK = 4

    def qacc(nt, b): return QACC + (nt * 2 + b) * 16

    def rdW(F):
        c, f = F // 16, F % 16
        dst = WF + (F % 8) * 4
        ks, nt = f // 4, f % 4
        off = (c % 4) * 16384 + ks * 4096
        return [I(f'ds_read_b64_tr_b16 {vr(dst, 2)}, v{vRK+nt} offset:{off}'),
                I(f'ds_read_b64_tr_b16 {vr(dst+2, 2)}, v{vRK+nt} offset:{off+1024}')]

    P.need(('W', 'abs', 0))
    P.add('s_barrier')
    for F in range(LOOK):
        P.add(rdW(F))
    S = Sched()
    for c in range(9):
        g0 = c * 32
        for f in range(16):
            F = c * 16 + f
            wf = vr(WF + (F % 8) * 4, 4)
            ks, nt = f // 4, f % 4
            for b in range(2):
                acc = vr(qacc(nt, b), 16)
                first = (c == 0 and ks == 0)
                S.mf(f'v_mfma_f32_32x32x16_bf16 {acc}, {wf}, {ar(xfr(c, ks, b), 4)}, {"0" if first else acc}')
            if F + LOOK < 144:
                a, b_ = rdW(F + LOOK)
                S.at(g0 + 2 * f, a)
                S.at(g0 + 2 * f + 1, b_)
        gb = g0 + 2 * (16 - LOOK) - 6
        if c + 1 < 9:
            S.at(gb, I('', need=[('W', 'abs', c + 1)]), prio=5)
            S.at(gb, I('s_barrier'), prio=5)
            if c + 3 < 9:
                d = dmaW(c + 3)
                S.at(gb + 1, d[0:2])
                for i in range(4):
                    S.at(gb + 2 + 2 * i, d[2 + i])
        else:
            S.at(gb, I('', need=[('KV', 'abs', 0)]), prio=5)
            S.at(gb, I('s_barrier'), prio=5)
        if c + 3 < 9:
            d = ldX(c + 3)
            S.at(g0 + 1, d[0])
            for i in range(8):
                S.at(g0 + 2 + 2 * i, d[1 + i])
        if c in (6, 7, 8):
            d = dmaKV()
            g = g0 + 1
            for x in d:
                S.at(g, x, prio=1)
                if x.kind == 'vmem':
                    g += 2
    QP = S.block()

    A1 = Block()
    if st_:
        A1.add(stamp(1))
    for p in range(8):
        A1.add(f'ds_read_b128 {ar(RING + 4*p, 4)}, v{vKb} offset:{1024*p}')
    for b in range(2):
        for nt in range(4):
            for rg in range(2):
                src = qacc(nt, b) + 8 * rg
                for jj in range(4):
                    A1.add(f'v_cvt_pk_bf16_f32 v{Q(b) + (2*nt+rg)*4 + jj}, v{src+2*jj}, v{src+2*jj+1}')
    A1.add(f'v_and_b32 v{t0}, 31, v{l}')
    A1.add(f'v_lshrrev_b32 v{t1}, 5, v{l}')
    A1.add(f'v_lshlrev_b32 v{t1}, 2, v{t1}')
    A1.add(f'v_sub_u32 v{t0}, v{t0}, v{t1}')
    A1.add(f'v_mov_b32 v{t1}, {NEG_BIG!r}')
    for rr in range(16):
        row = (rr & 3) + 8 * (rr >> 2)
        A1.add(f'v_cmp_lt_i32 vcc, v{t0}, {row}') if False else A1.add(f'v_cmp_gt_i32 vcc, {row}, v{t0}')
        A1.add(f'v_cndmask_b32 v{TB_+rr}, 0, v{t1}, vcc')
    A1.add(f's_or_b32 s{sT}, s{sJ}, s{sW}')
    A1.add(f's_cmp_eq_u32 s{sT}, 0')
    A1.add(f's_cselect_b32 s{sF1}, 1.0, 0')
    for rr in range(16):
        A1.add(f'v_mul_f32 v{CM+rr}, s{sF1}, v{TB_+rr}')
    for ks in range(8):
        for b in range(2):
            d = vr(S0 + 16 * b, 16)
            c_ = (vr(CM, 16) if b == 0 else '0') if ks == 0 else d
            A1.add(f'v_mfma_f32_32x32x16_bf16 {d}, {ar(RING + 4*ks, 4)}, {vr(Q(b) + 4*ks, 4)}, {c_}')
    for b in range(2):
        s_ = S0 + 16 * b
        m_ = vT + 4 + b
        A1.add(f'v_max3_f32 v{m_}, v{s_}, v{s_+1}, v{s_+2}')
        for k in range(3, 15, 2):
            A1.add(f'v_max3_f32 v{m_}, v{m_}, v{s_+k}, v{s_+k+1}')
        A1.add(f'v_max_f32 v{m_}, v{m_}, v{s_+15}')
    A1.add(f'v_mov_b32 v{t0}, v{vT+4}')
    A1.add(f'v_mov_b32 v{t1}, v{vT+5}')
    A1.add(f'v_permlane32_swap_b32 v{t0}, v{vT+4}')
    A1.add(f'v_permlane32_swap_b32 v{t1}, v{vT+5}')
    A1.add(f'v_max_f32 v{t0}, v{t0}, v{vT+4}')
    A1.add(f'v_max_f32 v{t1}, v{t1}, v{vT+5}')
    for rr in range(16):
        A1.add(f'v_xor_b32 v{MA+rr}, 0x80000000, v{t0}') if rr == 0 else A1.add(f'v_mov_b32 v{MA+rr}, v{MA}')
    for rr in range(16):
        A1.add(f'v_xor_b32 v{MB+rr}, 0x80000000, v{t1}') if rr == 0 else A1.add(f'v_mov_b32 v{MB+rr}, v{MB}')
    A1.add(f'v_mov_b32 v{vLA}, 0')
    A1.add(f'v_mov_b32 v{vLB}, 0')
    A1.add(f's_cmp_eq_u32 s{sJ}, 0')
    A1.add(f's_cselect_b32 s{sU}, 0, -4')
    if st_:
        A1.add(stamp(2))

    def pair(sreg, preg, lreg):
        return [I(f'v_exp_f32 v{sreg}, v{sreg}'), I(f'v_exp_f32 v{sreg+1}, v{sreg+1}'),
                I(f'v_add_f32 v{lreg}, v{lreg}, v{sreg}'), I(f'v_add_f32 v{lreg}, v{lreg}, v{sreg+1}'),
                I(f'v_cvt_pk_bf16_f32 v{preg}, v{sreg}, v{sreg+1}')]

    def stream(Sb, Pb, blocks):
        out = []
        for rg in range(2):
            for b in blocks:
                for jj in range(4):
                    out.append(pair(Sb + 16 * b + 8 * rg + 2 * jj, Pb + 8 * b + 4 * rg + jj, L(b)))
        return out

    def place(S, pairs, g0, g1):
        n = len(pairs)
        if n == 0:
            return
        span = g1 - g0
        for k, pr in enumerate(pairs):
            ga = g0 + (k * span) // n
            gb_ = g0 + ((2 * k + 1) * span) // (2 * n)
            S.at(ga, pr[0:2], prio=3)
            S.at(gb_, pr[2:5], prio=3)

    def mask_build(u_off, blk):
        out = [I(f's_add_i32 s{sT}, s{sU}, {u_off}'),
               I(f's_cmp_eq_i32 s{sT}, s{sW}'),
               I(f's_cselect_b32 s{sF1}, 1.0, 0'),
               I(f's_cmp_gt_i32 s{sT}, s{sW}'),
               I(f's_cselect_b32 s{sF2}, {NEG_BIG!r}, 0'),
               I(f'v_add_f32 v{vT}, s{sF2}, v{M(blk)}')]
        for rr in range(16):
            out.append(I(f'v_fma_f32 v{CM+rr}, v{TB_+rr}, s{sF1}, v{vT}'))
        return out

    def body(xb, yb, masked=None, first=False, tail=None, head_n=None, final=False, warm=False):
        S = Sched()
        pos_gap = []

        def ring(p): return ar(RING + (p % 16) * 4, 4)

        def unit_x(Sb, p0, msk):
            for ks in range(8):
                pos_gap.append(S.n())
                for b in xb:
                    d = vr(Sb + 16 * b, 16)
                    c0 = vr(CM, 16) if (msk and b == masked) else vr(M(b), 16)
                    S.mf(f'v_mfma_f32_32x32x16_bf16 {d}, {ring(p0+ks)}, {vr(Q(b)+4*ks, 4)}, {c0 if ks == 0 else d}')

        def unit_y(Pb, p0, blocks, zero):
            for rg in range(2):
                for dt in range(4):
                    pos_gap.append(S.n())
                    for b in blocks:
                        d = ar(O(b) + 16 * dt, 16)
                        S.mf(f'v_mfma_f32_32x32x16_bf16 {d}, {ring(p0+rg*4+dt)}, {vr(Pb+8*b+4*rg, 4)}, {"0" if (zero and rg == 0) else d}')

        if not final:
            unit_x(S0, 0, masked is not None)
        gX0e = S.n()
        if not first:
            if final:
                for _ in range(8): pos_gap.append(0)
            unit_y(P1, 8, yb, False)
        else:
            for _ in range(8): pos_gap.append(S.n())
        gY1e = S.n()
        if not final:
            unit_x(S1, 16, masked is not None)
            gX1e = S.n()
            unit_y(P0, 24, xb, first)
        gend = S.n()

        def rd(p, addr, off): return I(f'ds_read_b128 {ring(p)}, v{addr} offset:{off}')
        koff = lambda st, ks: (st * 8 + ks) * 1024
        voff = lambda kt, rg, dt: 16384 + (dt * 4 + 2 * kt + rg) * 1024
        if final:
            for k in range(8):
                S.at(-1, rd(8 + k, vKa, voff(1, k // 4, k % 4)))
        else:
            for k in range(8):
                if not first:
                    S.at(pos_gap[k], rd(8 + k, vKa, voff(1, k // 4, k % 4)))
                g = pos_gap[8 + k] if not first else pos_gap[k] + 1
                S.at(g, rd(16 + k, vKb, koff(1, k)))
                S.at(pos_gap[16 + k], rd(24 + k, vKb, voff(0, k // 4, k % 4)))
                S.at(pos_gap[24 + k], rd(32 + k, vKa, koff(0, k)))
            ga = pos_gap[8] if not first else pos_gap[0]
            S.at(ga + 1, I(f'v_add_u32 v{vKa}, s{s32K}, v{vKb}'), prio=3)
            S.at(ga + 2, I(f'v_and_b32 v{vKa}, 0x1ffff, v{vKa}'), prio=3)
            S.at(gend - 1, I(f'v_swap_b32 v{vKa}, v{vKb}'), prio=8)
            gb = pos_gap[16] + 1
            S.at(gb, I('', need=[('KV', 1)]), prio=5)
            S.at(gb, I('s_barrier'), prio=5)
            g = gb + 1
            step = max(1, (gend - g - 1) // 9)
            for x in dmaKV():
                S.at(g, x, prio=1)
                if x.kind == 'vmem':
                    g += step
        dual = len(xb) == 2
        if tail:
            tp, tg = tail
            place(S, tp, 0, tg) if not final else None
        if not final:
            s0 = stream(S0, P0, xb)
            s1 = stream(S1, P1, xb)
            hn = 7 if dual else 3
            if first:
                place(S, s0, gX0e + 2, gX1e + 8)
                place(S, s1[:hn], gX1e + 8, gend)
            elif len(yb) != len(xb):
                place(S, s0, gX0e + 8, gX1e)
                place(S, s1[:hn], gX1e + 2, gend)
            else:
                place(S, s0, gX0e + 2, gX1e + 2)
                place(S, s1[:hn], gX1e + 2, gend)
        if pf and warm:
            x, y = pf_step()
            S.at(pfgap, x, prio=1)
            S.at(pfgap + 1, y, prio=3)
        B = Block()
        if masked is not None:
            B.add(mask_build(0, masked))
            mb = mask_build(1, masked)
            g = S.pack(mb, 3, gY1e if not first else gX0e, cap=6)
            S.at(gend - 1, I(f's_add_i32 s{sU}, s{sU}, 2'), prio=8)
        if final:
            for pr in tail[0][:1]:
                S.at(-1, pr, prio=3)
            for k, pr in enumerate(tail[0][1:]):
                S.at(k, pr, prio=3)
        B.extend(S.block())
        return B

    def tail_of(blocks):
        s1 = stream(S1, P1, blocks)
        return s1[7:] if len(blocks) == 2 else s1[3:]

    F0 = body([0, 1], [], masked=0, first=True)
    D = body([0, 1], [0, 1], tail=(tail_of([0, 1]), 18), warm=('D' in pfin))
    DM = body([0, 1], [0, 1], masked=0, tail=(tail_of([0, 1]), 18))
    T = body([1], [0, 1], masked=1, tail=(tail_of([0, 1]), 15))
    SG = body([1], [1], tail=(tail_of([1]), 10), warm=('S' in pfin))
    SM = body([1], [1], masked=1, tail=(tail_of([1]), 10))
    FN = body([1], [1], tail=(tail_of([1]), 0), final=True)

    def epilogue(b):
        E = Block()
        lr = L(b)
        tb = vT + 8
        E.add(f'v_mov_b32 v{t0}, v{lr}')
        E.add(f'v_permlane32_swap_b32 v{t0}, v{lr}')
        E.add(f'v_add_f32 v{lr}, v{lr}, v{t0}')
        E.add(f'v_rcp_f32 v{t0}, v{lr}')
        E.add(f's_lshl_b32 s{sT}, s{sJ}, 2') if b == 0 else E.add(f's_lshl_b32 s{sT}, s{sJ}, 2')
        if b == 0:
            E.add(f's_add_u32 s{sT}, s{sT}, s{sW}')
        else:
            E.add(f's_sub_u32 s{sT}, 60, s{sT}')
            E.add(f's_add_u32 s{sT}, s{sT}, s{sW}')
        E.add(f's_lshl_b32 s{sT}, s{sT}, 18')
        E.add(f's_lshl_b32 s{sT+1}, s{sH}, 12')
        E.add(f's_add_u32 s{sT}, s{sT}, s{sT+1}')
        E.add(f'v_bfe_u32 v{t1}, v{l}, 4, 1')
        E.add(f'v_lshlrev_b32 v{t1}, 17, v{t1}')
        E.add(f'v_and_b32 v{t2}, 15, v{l}')
        E.add(f'v_lshl_add_u32 v{t1}, v{t2}, 4, v{t1}')
        E.add(f'v_lshrrev_b32 v{t2}, 5, v{l}')
        E.add(f'v_lshl_add_u32 v{t1}, v{t2}, 8, v{t1}')
        E.add(f'v_add_u32 v{t1}, s{sT}, v{t1}')
        E.add(f'v_mov_b32 v{t3}, v{t0}')
        k = 0
        for dt in range(4):
            for rg in range(2):
                x = CM if (k % 2 == 0) else CM + 8
                y = TMPO + 4 * (k % 2)
                k += 1
                for jj in range(8):
                    E.add(f'v_accvgpr_read_b32 v{x+jj}, a{O(b)+16*dt+8*rg+jj}')
                for jj in range(8):
                    E.add(f'v_mul_f32 v{x+jj}, v{x+jj}, v{t0}')
                for jj in range(4):
                    E.add(f'v_cvt_pk_bf16_f32 v{y+jj}, v{x+2*jj}, v{x+2*jj+1}')
                E.add(f'buffer_store_dwordx4 {vr(y,4)}, v{t1}, s[{sCT}:{sCT+3}], 0 offen offset:{dt*1024+rg*512} {store_mod}')
        return E
    TMPO = 240

    EA = epilogue(0)
    EB = epilogue(1)


    LIM = '0x53800000'
    KF, VF, SS, CF, PP, vMx, vAd = 64, 96, 128, 144, 160, 168, 170

    def fallback(b):
        nm = 'AB'[b]
        sN, sUu, sFl, sO2 = sT + 2, sT + 3, sT + 4, sT + 5
        A = Block()
        A.add(f'K2_FB{nm}:')
        A.add('s_waitcnt vmcnt(0) lgkmcnt(0)')
        A.add(f's_lshl_b32 s{sN}, s{sJ}, 2')
        if b == 1:
            A.add(f's_sub_u32 s{sN}, 60, s{sN}')
        A.add(f's_add_u32 s{sN}, s{sN}, s{sW}')
        A.add(f'v_mov_b32 v{vMx}, {NEG_BIG!r}')
        A.add(f's_mov_b32 s{sUu}, 0')

        def addr():
            return [I(f's_lshr_b32 s{sO2}, s{sUu}, 1'),
                    I(f's_lshl_b32 s{sO2}, s{sO2}, 15'),
                    I(f's_and_b32 s{sFl}, s{sUu}, 1'),
                    I(f's_lshl_b32 s{sT}, s{sFl}, 13'),
                    I(f's_add_u32 s{sT}, s{sT}, s{sO2}'),
                    I(f'v_lshlrev_b32 v{vAd+5}, 4, v{vl}'),
                    I(f'v_add_u32 v{vAd}, s{sT}, v{vAd+5}'),
                    I(f's_lshl_b32 s{sT}, s{sFl}, 11'),
                    I(f's_add_u32 s{sT}, s{sT}, s{sO2}'),
                    I(f's_add_u32 s{sT}, s{sT}, 16384'),
                    I(f'v_add_u32 v{vAd+1}, s{sT}, v{vAd+5}'),
                    I(f'v_add_u32 v{vAd+2}, 4096, v{vAd+1}'),
                    I(f'v_add_u32 v{vAd+3}, 8192, v{vAd+1}'),
                    I(f'v_add_u32 v{vAd+4}, 12288, v{vAd+1}'),
                    I(f'v_add_u32 v{vAd+5}, 4096, v{vAd}'),
                    I(f's_cmp_eq_u32 s{sUu}, s{sN}'),
                    I(f's_cselect_b32 s{sFl}, 1.0, 0')]

        def loadK():
            return [I(f'buffer_load_dwordx4 {vr(KF+4*ks,4)}, v{vAd + (5 if ks >= 4 else 0)}, s[{sKV}:{sKV+3}], 0 offen offset:{1024*(ks&3)}')
                    for ks in range(8)]

        def scores():
            return [I(f'v_mfma_f32_32x32x16_bf16 {vr(SS,16)}, {vr(KF+4*ks,4)}, {vr(Q(b)+4*ks,4)}, {vr(CF,16) if ks == 0 else vr(SS,16)}')
                    for ks in range(8)]
        L1 = Block()
        L1.add(f'K2_FB{nm}1:')
        L1.add(addr()); L1.add(loadK())
        for rr in range(16):
            L1.add(f'v_mul_f32 v{CF+rr}, s{sFl}, v{TB_+rr}')
        L1.add(scores())
        for rr in range(0, 16, 2):
            L1.add(f'v_max3_f32 v{vMx}, v{vMx}, v{SS+rr}, v{SS+rr+1}')
        L1.add(f's_add_u32 s{sUu}, s{sUu}, 1')
        L1.add(f's_cmp_le_u32 s{sUu}, s{sN}')
        L1.add(f's_cbranch_scc1 K2_FB{nm}1')
        Mi = Block()
        Mi.add(f'v_mov_b32 v{vAd}, v{vMx}')
        Mi.add(f'v_permlane32_swap_b32 v{vAd}, v{vMx}')
        Mi.add(f'v_max_f32 v{vMx}, v{vMx}, v{vAd}')
        Mi.add(f'v_mov_b32 v{L(b)}, 0')
        for r_ in range(64):
            Mi.add(f'v_accvgpr_write_b32 a{O(b)+r_}, 0')
        Mi.add(f's_mov_b32 s{sUu}, 0')
        L2 = Block()
        L2.add(f'K2_FB{nm}2:')
        L2.add(addr()); L2.add(loadK())
        for dt in range(4):
            for rg in range(2):
                L2.add(f'buffer_load_dwordx4 {vr(VF+4*(rg*4+dt),4)}, v{vAd+1+dt}, s[{sKV}:{sKV+3}], 0 offen offset:{1024*rg}')
        for rr in range(16):
            L2.add(f'v_fma_f32 v{CF+rr}, v{TB_+rr}, s{sFl}, -v{vMx}')
        L2.add(scores())
        for rg in range(2):
            for jj in range(4):
                L2.add(pair(SS + 8 * rg + 2 * jj, PP + 4 * rg + jj, L(b)))
        for rg in range(2):
            for dt in range(4):
                d = ar(O(b) + 16 * dt, 16)
                L2.add(f'v_mfma_f32_32x32x16_bf16 {d}, {vr(VF+4*(rg*4+dt),4)}, {vr(PP+4*rg,4)}, {d}')
        L2.add(f's_add_u32 s{sUu}, s{sUu}, 1')
        L2.add(f's_cmp_le_u32 s{sUu}, s{sN}')
        L2.add(f's_cbranch_scc1 K2_FB{nm}2')
        Z = epilogue(b)
        Z.add(f's_branch K2_BACK{nm}')
        return [A, L1, Mi, L2, Z]

    CHK = Block()
    FB = []
    if fallback_on:
        for b in range(2):
            CHK.add(f'v_cmp_nge_f32 vcc, {LIM}, v{L(b)}')
            CHK.add('s_nop 4')
            CHK.add(f's_cbranch_vccnz K2_FB{"AB"[b]}')
            CHK.add(f'K2_BACK{"AB"[b]}:')
            FB.append(fallback(b))

    C0 = Block()
    C0.add(f's_lshl_b32 s{sCnt}, s{sJ}, 1')
    C0.add(f's_cmp_eq_u32 s{sJ}, 0')
    C0.add('s_cbranch_scc1 K2_DM_J0')
    C0.add(f's_sub_u32 s{sCnt}, s{sCnt}, 1')
    C0.add('K2_D:')
    C1 = Block()
    C1.add(f's_sub_u32 s{sCnt}, s{sCnt}, 1')
    C1.add(f's_cmp_lg_u32 s{sCnt}, 0')
    C1.add('s_cbranch_scc1 K2_D')
    C1.add(f's_mov_b32 s{sU}, 0')
    C1.add('K2_DM_J0:')
    C1.add('K2_DM:')
    C2 = Block()
    C2.add(f's_cmp_lt_i32 s{sU}, 4')
    C2.add('s_cbranch_scc1 K2_DM')
    C2.add(f's_cmp_eq_u32 s{sJ}, 7')
    C2.add(f's_cselect_b32 s{sU}, 0, -4')
    C3 = Block()
    C3.add(f's_cmp_eq_u32 s{sJ}, 7')
    C3.add('s_cbranch_scc1 K2_SM')
    C3.add(f's_lshl_b32 s{sCnt}, s{sJ}, 2')
    C3.add(f's_sub_u32 s{sCnt}, 27, s{sCnt}')
    C3.add('K2_S:')
    C4 = Block()
    C4.add(f's_sub_u32 s{sCnt}, s{sCnt}, 1')
    C4.add(f's_cmp_lg_u32 s{sCnt}, 0')
    C4.add('s_cbranch_scc1 K2_S')
    C4.add(f's_mov_b32 s{sU}, 0')
    C4.add('K2_SM:')
    C5 = Block()
    C5.add(f's_cmp_lt_i32 s{sU}, 4')
    C5.add('s_cbranch_scc1 K2_SM')
    END = Block()
    if st_:
        END.add(stamp(5))
    if ts:
        END.add('v_mov_b32 v0, v255')
        ts_end(END, 1)
    if st_:
        stamps_out(END, 6)
    END.add('K2_END:')
    END.add('s_endpgm')
    if st_:
        C2.add(stamp(3))
        C3.insert(0, stamp(4))

    blocks = [P, QP, A1, F0, C0, D, C1, DM, C2, T, EA, C3, SG, C4, SM, C5, FN, EB, CHK, END] + [x for f in FB for x in f]
    pre = [P, QP, A1, F0, C0]
    paths = [
        pre + [D, C1, DM, C2, DM, C2, T, EA, C3, SG, C4, SM, C5, SM, C5, FN, EB, CHK, END],
        pre + [D, C1, D, C1, D, C1, D, C1, DM, C2, DM, C2, T, EA, C3, SG, C4, SG, C4, SG, C4, SG, C4, SM, C5, SM, C5, FN, EB, CHK, END],
        pre + [DM, C2, T, EA, C3, SG, C4, SG, C4, SG, C4, SM, C5, SM, C5, FN, EB, CHK, END],
        pre + [D, C1, D, C1, D, C1, DM, C2, DM, C2, T, EA, C3, SM, C5, FN, EB, CHK, END],
    ]
    for a, l1, mi, l2, z in FB:
        paths.append([EB, CHK, a, l1, l1, mi, l2, l2, z, CHK, END])
    resolve_waits(paths)
    resolve_hazards(paths, name='K2')
    for nm, b in (('P', P), ('QP', QP), ('A1', A1), ('F0', F0), ('D', D), ('DM', DM), ('T', T), ('EA', EA), ('SG', SG), ('SM', SM), ('FN', FN)):
        print('K2', nm, estimate(b))
    return kernel_text(NAME, blocks, vgpr=512, acc=256)


if __name__ == '__main__':
    open('k2.s', 'w').write(gen(ts=True, st_=True))
```

```python
import re, sys
import build
parts = build.default_parts()
def copy_of(text, label):
    labs = re.findall(r'^([A-Za-z_.][A-Za-z0-9_.]*):', text, re.M)
    for l in sorted(labs, key=len, reverse=True):
        new = l.replace('_kernel', 'c_kernel') if l.endswith('_kernel') else l + 'C'
        text = re.sub(r'(?<![A-Za-z0-9_.])' + re.escape(l) + r'(?![A-Za-z0-9_])', new, text)
    return label.replace('_kernel', 'c_kernel'), text
for i in range(5):
    label, grid, lds, text = parts[i]
    nl, nt = copy_of(text, label)
    p = parts[:i + 1] + [(nl, grid, lds, nt)] + parts[i + 1:]
    print(build.build(p, f'cp{i+1}.s'))
```
